```python
import torch

def _softmax(x, axis=-1):
    return torch.softmax(x, dim=axis)
def _gelu(x):
    return torch.nn.functional.gelu(x, approximate="tanh")
def _silu(x):
    return torch.nn.functional.silu(x)
def _sigmoid(x):
    return torch.sigmoid(x)
def _layernorm(x, axis=-1, eps=1e-5):
    m = x.mean(dim=axis, keepdim=True)
    v = x.var(dim=axis, keepdim=True, unbiased=False)
    return (x - m) / torch.sqrt(v + eps)
def _scatter_add(tgt, idx, src, axis=0):
    return tgt.clone().index_add_(axis, idx, src)
def _segment_sum(src, seg, n):
    out = torch.zeros((n,) + src.shape[1:], dtype=src.dtype)
    return out.index_add_(0, seg, src)
def _pad(x, pw):
    flat = tuple(v for pair in reversed(pw) for v in pair)
    return torch.nn.functional.pad(x, flat)

kernel_name = 'standalone__linear_kernel_rfa__decode'

def setup_inputs():

    _w = (lambda a: (lambda t: t.to(torch.bfloat16) if t.is_floating_point() else t)(torch.as_tensor(a)))
    B, H, Sq, Sk, D, M = 8, 32, 1, 4096, 128, 64
    return {
        "q": _w((lambda *s: torch.randn(*s, dtype=torch.bfloat16) * 0.2)(B, H, Sq, D)),
        "k": _w((lambda *s: torch.randn(*s, dtype=torch.bfloat16) * 1.6)(B, H, Sk, D)),
        "v": _w((lambda *s: torch.randn(*s, dtype=torch.bfloat16) * 1.6)(B, H, Sk, D)),
        "omega": _w((lambda *s: torch.randn(*s, dtype=torch.bfloat16) * 1.6)(M, D)),
    }

def reference(q, k, v, omega):
    d = q.shape[-1]
    m = omega.shape[0]
    scale = float(d) ** -0.25
    qs = q * scale
    ks = k * scale
    q_proj = torch.einsum("bhsd,md->bhsm", qs, omega)
    k_proj = torch.einsum("bhsd,md->bhsm", ks, omega)
    q_sq = 0.5 * torch.einsum("bhsd,bhsd->bhs", qs, qs)[..., None]
    k_sq = 0.5 * torch.einsum("bhsd,bhsd->bhs", ks, ks)[..., None]
    inv_sqrt_m = float(m) ** -0.5
    phi_q = torch.exp(q_proj - q_sq) * inv_sqrt_m + 1e-6
    phi_k = torch.exp(k_proj - k_sq) * inv_sqrt_m + 1e-6
    kv = torch.einsum("bhsm,bhsd->bhmd", phi_k, v)
    z  = torch.einsum("bhsm->bhm", phi_k)
    num = torch.einsum("bhqm,bhmd->bhqd", phi_q, kv)
    den = torch.einsum("bhqm,bhm->bhq", phi_q, z)[..., None] + 1e-6
    return num / den
```

```python
import re

TRANS = ('v_exp_f32','v_log_f32','v_rcp_f32','v_rsq_f32','v_sqrt_f32','v_sin_f32','v_cos_f32','v_rcp_iflag_f32')
def regs_of(op):
    op = op.strip()
    op = op.replace('-','',1) if op.startswith('-') and not re.match(r'-[0-9.]',op) else op
    m = re.match(r'^abs\((.*)\)$', op) or re.match(r'^\|(.*)\|$', op)
    if m: op = m.group(1)
    m = re.match(r'^([vsa])(\d+)$', op)
    if m: return {(m.group(1), int(m.group(2)))}
    m = re.match(r'^([vsa])\[(\d+):(\d+)\]$', op)
    if m: return {(m.group(1), i) for i in range(int(m.group(2)), int(m.group(3))+1)}
    if op in ('vcc','vcc_lo','vcc_hi'): return {('vcc',0)}
    if op == 'm0': return {('m0',0)}
    if op in ('exec','exec_lo','exec_hi'): return {('exec',0)}
    return set()

class Ins:
    def __init__(self, text):
        self.text = text
        t = text.split(';')[0].strip()
        self.is_label = t.endswith(':')
        self.is_dir = t.startswith('.')
        self.kind = 'other'; self.w = set(); self.r = set(); self.passes = 0
        self.A = self.B = self.C = self.D = set()
        self.states = 1
        if self.is_label or self.is_dir or not t:
            self.states = 0; self.op = ''; return
        parts = t.split(None, 1)
        self.op = op = parts[0]
        rest = parts[1] if len(parts) > 1 else ''
        ops = []; cur = ''; depth = 0
        for ch in rest:
            if ch in '[(': depth += 1
            if ch in '])': depth -= 1
            if ch == ',' and depth == 0: ops.append(cur); cur = ''
            else: cur += ch
        if cur.strip(): ops.append(cur)
        mods = ''
        if ops:
            l = ops[-1].strip().split(None, 1)
            ops[-1] = l[0]
            mods = l[1] if len(l) > 1 else ''
        ops = [o.strip() for o in ops]
        self.ops = ops; self.mods = mods
        R = [regs_of(o) for o in ops]
        base = re.sub(r'_(e32|e64|dpp|sdwa)$', '', op)
        self.base = base
        if op == 's_nop':
            self.kind = 'nop'; self.states = int(ops[0], 0) + 1
        elif op.startswith('v_mfma'):
            self.kind = 'sgemm' if op.endswith('_f32') and '_bf16' not in op and re.search(r'x\d+_(\d+b_)?f32$', op) else 'xdl'
            if self.kind == 'xdl': self.passes = 8 if '32x32' in op else (2 if '4x4x4' in op else 4)
            else: self.passes = 16 if '32x32' in op else 8
            self.D, self.A, self.B, self.C = R[0], R[1], R[2], R[3]
            self.w = set(self.D); self.r = self.A | self.B | self.C
        elif op.startswith('v_'):
            self.kind = 'valu'
            self.trans = base in TRANS
            if base.startswith('v_cmp'):
                self.w = R[0]; self.r = set().union(*R[1:])
                if base.startswith('v_cmpx'): self.w = self.w | {('exec',0)}
            elif base in ('v_permlane16_swap_b32','v_permlane32_swap_b32','v_swap_b32'):
                self.w = R[0] | R[1]; self.r = R[0] | R[1]
            elif base in ('v_add_co_u32','v_sub_co_u32','v_addc_co_u32','v_subb_co_u32','v_div_scale_f32'):
                self.w = R[0] | R[1]; self.r = set().union(*R[2:])
            else:
                self.w = R[0]; self.r = set().union(*R[1:]) if len(R) > 1 else set()
                if base in ('v_fmac_f32','v_dot2c_f32_bf16','v_writelane_b32','v_pk_fmac_f16') or 'dpp' in op or 'row_' in mods or 'quad_perm' in mods: self.r = self.r | R[0]
                if base == 'v_div_fmas_f32': self.r = self.r | {('vcc',0)}
            self.dpp = ('dpp' in op) or ('row_' in mods) or ('quad_perm' in mods) or ('wave_' in mods)
        elif op.startswith('buffer_') or op.startswith('global_'):
            self.kind = 'vmem'
            lds = (' lds' in ' ' + mods) or ('_lds_' in op)
            self.lds = lds
            allr = set().union(*R) if R else set()
            if 'load' in op and not lds:
                self.w = R[0]; self.r = set().union(*R[1:])
            elif 'atomic' in op and 'sc0' in mods:
                if op.startswith('global_'): self.w = R[0]; self.r = set().union(*R[1:])
                else: self.w = R[0]; self.r = allr
            else:
                self.r = allr
            if lds: self.r = self.r | {('m0',0)}
            self.widestore = ('store' in op) and ('x4' in op or 'x3' in op)
            if self.widestore:
                self.sdata = R[0] if op.startswith('buffer_') else R[1]
        elif op.startswith('ds_'):
            self.kind = 'ds'
            if 'read' in op or 'permute' in op or 'swizzle' in op or '_rtn' in op:
                self.w = R[0]; self.r = set().union(*R[1:])
            else:
                self.r = set().union(*R)
        elif op.startswith('s_'):
            self.kind = 'salu'
            if op.startswith(('s_cmp','s_waitcnt','s_barrier','s_branch','s_cbranch','s_endpgm','s_setprio','s_bitcmp','s_sleep')):
                self.r = set().union(*R) if R else set()
            else:
                self.w = R[0] if R else set(); self.r = set().union(*R[1:]) if len(R) > 1 else set()
                if 'saveexec' in op: self.w = self.w | {('exec',0)}

def vg(s): return {x for x in s if x[0] in 'va'}
def sg(s): return {x for x in s if x[0] in ('s','vcc')}

def need(p, c):
    n = 0
    mf = ('xdl','sgemm')
    if p.kind == 'valu':
        if p.base.startswith('v_dot') and c.kind in ('valu','xdl','sgemm','vmem','ds') and vg(p.w) & (c.r | c.w):
            same = c.kind == 'valu' and c.base == p.base and not (vg(p.w) & (regs_of(c.ops[1]) | regs_of(c.ops[2])))
            if not same: n = max(n, 3)
        if c.kind in mf and vg(p.w) & c.r: n = max(n, 2)
        if c.kind in mf and ('exec',0) in p.w: n = max(n, 4)
        if c.kind == 'valu':
            if p.trans and not c.trans and vg(p.w) & c.r: n = max(n, 1)
            if sg(p.w) & c.r:
                n = max(n, 4 if c.base in ('v_readlane_b32','v_writelane_b32','v_div_fmas_f32') else 2)
            if c.base in ('v_readlane_b32','v_readfirstlane_b32') and vg(p.w) & c.r: n = max(n, 1)
            if c.base.startswith('v_permlane') and vg(p.w) & c.r: n = max(n, 2)
            if c.dpp and vg(p.w) & c.r: n = max(n, 2)
            if ('exec',0) in p.w and (c.dpp): n = max(n, 5)
            if ('exec',0) in p.w and c.base in ('v_readlane_b32','v_readfirstlane_b32','v_writelane_b32') : n = max(n, 4)
            if ('op_sel' in p.mods or 'dst_sel' in p.mods) and not p.base.startswith('v_pk_') and vg(p.w) & (c.r | c.w): n = max(n, 1)
        if c.kind == 'vmem' and sg(p.w) & c.r: n = max(n, 5)
        if c.kind == 'salu' and sg(p.w) & c.r: n = max(n, 1)
    if p.kind == 'xdl':
        ps = p.passes
        if c.kind in mf:
            if p.D & c.C:
                if c.kind == 'xdl' and p.D == c.C and c.passes == ps: n = max(n, 0 if ps >= 4 else 2)
                else: n = max(n, ps + 2)
            if p.D & (c.A | c.B): n = max(n, ps + 4)
            if p.D & c.D and not (p.D == c.D and c.passes == ps and c.kind == 'xdl'): n = max(n, ps + 4)
        if c.kind == 'valu':
            if p.D & (c.r | c.w): n = max(n, ps + 4)
            if p.C & c.w: n = max(n, ps - 1)
        if c.kind in ('vmem','ds') and p.D & (c.r | c.w): n = max(n, ps + 4)
    if p.kind == 'sgemm':
        ps = p.passes
        if c.kind in mf:
            if p.D & c.C and c.kind == 'sgemm' and not (p.D == c.C): n = max(n, ps)
            if p.D & c.C and c.kind == 'xdl': n = max(n, ps + 2)
            if p.D & (c.A | c.B): n = max(n, ps + 2)
            if p.D & c.D and not (p.D == c.D and c.kind == 'sgemm'): n = max(n, ps + 2)
        if c.kind == 'valu' and p.D & (c.r | c.w): n = max(n, ps + 2)
        if c.kind in ('vmem','ds') and p.D & (c.r | c.w): n = max(n, ps + 2)
    if p.kind == 'vmem' and getattr(p, 'widestore', False):
        if c.kind == 'valu' and p.sdata & c.w: n = max(n, 2)
        elif p.sdata & c.w: n = max(n, 1)
    if p.kind == 'salu' and ('m0',0) in p.w:
        if c.kind == 'vmem' and c.lds: n = max(n, 1)
        if c.kind == 'valu' and ('m0',0) in c.r: n = max(n, 1)
    return n

MAXD = 24
class Asm:
    def __init__(self):
        self.ins = []
    def __call__(self, text):
        for l in text.split('\n'):
            self.ins.append(Ins(l.strip()))
    def raw(self, text):
        i = Ins(''); i.text = text; self.ins.append(i)
    def finalize(self):
        ins = self.ins
        labels = {i.text.split(';')[0].strip()[:-1]: k for k, i in enumerate(ins) if i.is_label}
        pad = [0]*len(ins)
        def preds(k):
            res = []
            if k > 0:
                p = ins[k-1]
                if not (p.op in ('s_branch','s_endpgm')): res.append(k-1)
            if ins[k].is_label:
                name = ins[k].text.split(';')[0].strip()[:-1]
                for j, b in enumerate(ins):
                    if b.op.startswith(('s_branch','s_cbranch')) and b.ops and b.ops[0] == name: res.append(j)
            return res
        P = [preds(k) for k in range(len(ins))]
        changed = True
        while changed:
            changed = False
            for k, c in enumerate(ins):
                if c.states == 0: continue
                stack = [(j, pad[k]) for j in P[k]]
                seen = {}
                req = 0
                while stack:
                    j, d = stack.pop()
                    if d >= MAXD: continue
                    if seen.get(j, 99) <= d: continue
                    seen[j] = d
                    p = ins[j]
                    if p.states:
                        n = need(p, c)
                        if n > d: req = max(req, n - d)
                    d2 = d + (p.states + pad[j] if p.states else 0)
                    for q in P[j]: stack.append((q, d2))
                if req > 0:
                    pad[k] += req; changed = True
        out = []
        nn = 0
        for k, i in enumerate(ins):
            n = pad[k]
            while n > 0:
                m = min(n, 16); out.append(f'    s_nop {m-1}'); n -= m; nn += 1
            t = i.text
            out.append(t if (i.is_label or i.is_dir or t.startswith(';') or not t) else '    ' + t)
        self.nops = sum(pad)
        return '\n'.join(out) + '\n'
```

```python
import sys, struct, ast
sys.path.insert(0, 'gen')
from asmlib import Asm
KN = 'standalone__linear_kernel_rfa__decode_kernel'
def f32(x): return '0x%08x' % struct.unpack('<I', struct.pack('<f', x))[0]

HEADER = """; Kernarg layout for this problem (56 bytes, ptrs only, base s[0:1]):
;   offset  32: d_out     shape=(8, 32, 1, 128) dtype=bfloat16 (2 bytes/elem)
"""

def gen(order='bd', lo=18, hi=27, base=21, w0=21, sh=4, gb=3, rp=2, ofs=6, spread=768, sen=6,
        pol='nt', stamps=0, warm=1, touch=1, prio=3, zwg=0, sq='dot', last=61, tail=0, extra=1, so='ahijc', touch2=0, fin=1, opol='', ee=0, ex=0, leak=1, nocomp=0, anti=0, heavy=0, chain=1, spw=2, sps=0, perm=0, fold=1, sep=0):
    bitof = lambda ch: int(ch) if ch.isdigit() else ord(ch) - ord('a') + 10
    ib = [bitof(c) for c in order]
    tb0 = max(ib) + 1
    dem = [b for b in range(10, tb0) if b not in ib]
    DMASK = sum(1 << b for b in dem)
    IOFF = [0, 1 << ib[0], 1 << ib[1], (1 << ib[0]) + (1 << ib[1])]
    WINS = list(range(lo, hi + 1))
    CTL = True
    NZ = 1
    CB = 16384; RB = 0
    PB = CB + 64*spread
    PTAG = 0x5c3a0000
    OMW = 131072; QS = OMW + 16384; DENA = QS + 256; LDS = QS + 512
    a = Asm()
    a.raw(HEADER.rstrip())
    a.raw(f'; @launch grid=(256,1,1) block=(576,1,1) lds={LDS}')
    a.raw('.amdgcn_target "amdgcn-amd-amdhsa--gfx950"')
    a.raw('.text'); a.raw(f'.globl {KN}'); a.raw('.p2align 8'); a.raw(f'.type {KN},@function')
    a(f'{KN}:')
    nxt = [1]
    def V(n=1, al=1):
        b = (nxt[0] + al - 1)//al*al; nxt[0] = b + n; return b
    vL, vJ, vG, vY, vWA, vCS, vC1, vDUM = [V() for _ in range(8)]
    AK = V(4, 4); T = V(8, 4); G = V(4, 4); S = V(4, 4); PHI = V(8, 4); E = V(8, 4)
    KR = V(16, 4); P = V(16, 4); OM = V(64, 4)
    NV = nxt[0]
    assert NV <= 168, NV
    W = S
    ACC = OM; MASK = OM + 4; vM01 = OM + 8; vDEN = OM + 9; vONE = OM + 10; W4 = OM + 12; FR = OM + 16
    def q(b): return f'v[{b}:{b+3}]'
    sX = 's[16:19]'
    sQ, sOUT = 's[20:23]', 's[24:27]'
    sW, sC, sSLOT, sCNT, sC0, sMODE, sOFF, sWB = 's3', 's28', 's29', 's30', 's32', 's36', 's37', 's38'
    DM = ['s[40:41]', 's[42:43]', 's[44:45]', 's[46:47]']
    def stamp(n):
        if stamps == 2 or (stamps == 3 and n == 4): a(f's_memrealtime s[{52+2*n}:{53+2*n}]')
    a('s_cmp_ge_u32 s2, 256'); a('s_cbranch_scc1 L_done')
    a('s_load_dwordx8 s[4:11], s[0:1], 0')
    a(f'v_readfirstlane_b32 {sW}, v0')
    a(f'v_and_b32 v{vJ}, 15, v0')
    a(f'v_bfe_u32 v{vG}, v0, 4, 2')
    a(f'v_lshlrev_b32 v{T}, 2, v{vG}')
    a(f'v_xor_b32 v{T}, v{T}, v{vJ}')
    a(f'v_lshlrev_b32 v{T}, 4, v{T}')
    a(f'v_lshl_add_u32 v{AK}, v{vG}, 8, v{T}')
    a('s_mov_b32 s19, 0x20000')
    a(f's_lshr_b32 {sW}, {sW}, 6'); a('s_cbranch_scc1 L_cons')
    if CTL: a('s_load_dwordx4 s[20:23], s[0:1], 40')
    for n in range(1, 4):
        assert (IOFF[n] - 1024*n) % 1024 == 0 and IOFF[n] >= 1024*n
        a(f'v_xor_b32 v{AK+n}, {16*n + IOFF[n] - 1024*n}, v{AK}')
    if prio: a(f's_setprio {prio}')
    a('s_lshl_b32 s14, s2, 20')
    a('s_mov_b32 s18, 0x100000')
    a('s_mov_b32 m0, 0'); a(f's_mov_b32 {sOFF}, 0')
    a('s_waitcnt lgkmcnt(0)')
    a('s_add_u32 s16, s6, s14'); a('s_addc_u32 s17, s7, 0')
    vPA, vPB, vBA, vP, vR, vS = T, T+1, T+2, T+3, T+4, T+5
    sVAR, sTURN, sR, sEN, sB, sN, sSL, sOFS, sMK, sS = 's31', 's32', 's33', 's34', 's35', 's36', 's24', 's25', 's26', 's27'
    def load(n, imm):
        a(f's_waitcnt vmcnt({imm})')
        a(f'buffer_load_dwordx4 v{AK+n}, {sX}, {sOFF} offen offset:{1024*n} {pol} lds')
    def imm(w, n):
        k = w - 1
        return k + (k - n)//4 + 1 + extra
    def tile_end():
        a(f'v_add_u32 v{vP}, 1, v{vP}')
        a('s_add_u32 m0, m0, 4096')
        a(f's_add_u32 {sOFF}, {sOFF}, {1 << tb0}')
        a(f'global_store_dword v{vPA}, v{vP}, s[22:23]')
    SO = [bitof(c) for c in so]
    assert sorted(SO + ib + [tb0, tb0+1, tb0+2]) == list(range(10, 20))
    def stage_off():
        groups = {}
        for k, b in enumerate(SO): groups.setdefault(b - k, []).append(b)
        left = sorted(groups); first = True
        while left:
            pick = [left[0]]
            for x in left[1:]:
                if x - pick[-1] >= 7: pick.append(x)
            left = [x for x in left if x not in pick]
            d = sOFF if first else 's15'
            if len(pick) > 1: a(f's_mul_i32 {d}, {sCNT}, {hex(sum(1 << x for x in pick))}')
            else: a(f's_lshl_b32 {d}, {sCNT}, {pick[0]}')
            a(f's_and_b32 {d}, {d}, {hex(sum(1 << b for x in pick for b in groups[x]))}')
            if not first: a(f's_or_b32 {sOFF}, {sOFF}, s15')
            first = False
    a('L_s:')
    for n in range(4): load(n, w0 - 1)
    a('s_add_u32 m0, m0, 4096')
    a(f's_add_u32 {sOFF}, {sOFF}, {1 << tb0}')
    a(f's_and_b32 s15, {sOFF}, {hex(7 << tb0)}')
    a('s_cbranch_scc1 L_s')
    a('s_getreg_b32 s15, hwreg(HW_REG_XCC_ID, 0, 3)')
    a(f's_getreg_b32 {sSL}, hwreg(HW_REG_HW_ID, 8, 4)')
    a('s_getreg_b32 s13, hwreg(HW_REG_HW_ID, 13, 2)')
    a('s_mul_i32 s15, s15, 1280'); a(f's_add_u32 s15, s15, {PB}')
    a(f's_lshl4_add_u32 {sSL}, s13, {sSL}')
    a(f'v_lshl_add_u32 v{vPB}, v0, 2, s15')
    a(f's_lshl2_add_u32 s13, {sSL}, s15'); a(f'v_mov_b32 v{vPA}, s13')
    a('s_add_u32 s15, s15, 252'); a(f'v_mov_b32 v{vBA}, s15')
    a(f'v_mov_b32 v{vP}, {hex(PTAG + 8)}'); a(f'v_mov_b32 v{vR}, 0')
    a(f'global_store_dword v{vBA}, v{vR}, s[22:23]')
    a(f's_lshr_b32 {sTURN}, s2, 3')
    if rp > 1: a(f's_lshl_b32 {sTURN}, {sTURN}, {rp.bit_length()-1}')
    a(f's_mov_b32 {sMK}, 0'); a(f's_mov_b32 {sOFS}, 0'); a(f's_mov_b32 {sCNT}, 1'); a(f's_mov_b32 {sOFF}, {1 << SO[0]}'); a(f's_mov_b32 {sEN}, 0'); a(f's_mov_b32 {sB}, 0')
    if anti: a('s_mov_b32 s29, 0')
    bi = WINS.index(base)
    order_ = [bi] + [i for d in range(1, len(WINS)) for i in (bi + d, bi - d) if 0 <= i < len(WINS)]
    def variant(i):
        w = WINS[i]
        a(f'L_w{i}:')
        for n in range(4): load(n, imm(w, n))
        tile_end()
        a(f's_andn2_b32 s15, {hex(3 << tb0)}, {sOFF}')
        a(f's_cbranch_scc1 L_w{i}')
        load(0, imm(w, 0))
        a(f'v_mov_b32 v{vS}, v{vR}')
        a(f'v_readlane_b32 {sN}, v{vS}, {sSL}')
        a(f'v_readlane_b32 {sB}, v{vS}, 63')
        a(f'v_subrev_u32 v{vS}, {sN}, v{vS}')
        a(f'v_writelane_b32 v{vS}, 0, 63')
        load(1, imm(w, 1))
        for x in (1, 2): a(f'v_add_u32_dpp v{vS}, v{vS}, v{vS} row_shr:{x} row_mask:0xf bank_mask:0xf bound_ctrl:1')
        load(2, imm(w, 2))
        for x in (4, 8): a(f'v_add_u32_dpp v{vS}, v{vS}, v{vS} row_shr:{x} row_mask:0xf bank_mask:0xf bound_ctrl:1')
        load(3, imm(w, 3))
        a(f'v_add_u32_dpp v{vS}, v{vS}, v{vS} row_bcast:15 row_mask:0xa bank_mask:0xf')
        a(f'v_add_u32 v{vP}, 1, v{vP}')
        a('s_add_u32 m0, m0, 4096')
        a(f'v_add_u32_dpp v{vS}, v{vS}, v{vS} row_bcast:31 row_mask:0xc bank_mask:0xf')
    variant(order_[0])
    a('L_se:')
    a(f'global_store_dword v{vPA}, v{vP}, s[22:23]')
    a(f'v_readlane_b32 {sS}, v{vS}, 63')
    a(f'global_load_dword v{vR}, v{vPB}, s[22:23] nt')
    a(f's_add_u32 {sOFF}, {sOFF}, {1 << tb0}')
    a(f's_add_u32 {sS}, {sS}, {sB}')
    a(f's_add_u32 {sS}, {sS}, {sOFS}')
    a(f's_and_b32 {sS}, {sS}, {sMK}')
    a(f's_ashr_i32 {sVAR}, {sS}, {sh}')
    a(f's_bitcmp1_b32 {sOFF}, {tb0+2}'); a('s_cbranch_scc0 L_st')
    if anti:
        a('s_cmp_eq_u32 s29, 0'); a('s_cbranch_scc1 L_top')
        a('s_barrier')
    a('L_top:')
    up, dn = len(WINS) - 1 - bi, bi
    for i in order_:
        d = i - bi
        if d == up and d > 0: a(f's_cmp_ge_i32 {sVAR}, {d}')
        elif d == -dn and d < 0: a(f's_cmp_le_i32 {sVAR}, {d}')
        else: a(f's_cmp_eq_i32 {sVAR}, {d}')
        if i == order_[-1]:
            a.ins.pop(); a(f's_branch L_w{i}')
        else: a(f's_cbranch_scc1 L_w{i}')
    a('L_st:')
    a('s_and_b32 m0, m0, 0x1ffff')
    a(f's_add_u32 {sCNT}, {sCNT}, 1')
    stage_off()
    if ee: a(f's_cmp_ge_u32 {sCNT}, {ee}'); a(f's_cselect_b32 s15, {ex}, 0'); a(f's_add_u32 {sOFS}, {sOFS}, s15')
    a(f's_cmp_le_u32 {sCNT}, 4'); a('s_cbranch_scc1 L_early')
    a(f's_sub_u32 s15, {sCNT}, {sTURN}'); a('s_add_u32 s15, s15, 1')
    if rp == 1: a('s_and_b32 s15, s15, 31')
    a('s_cmp_le_u32 s15, 2'); a('s_cbranch_scc1 L_rep')
    a('L_c2:')
    if anti: a('s_cmp_lg_u32 s29, 0'); a('s_cbranch_scc1 L_c3')
    a('s_barrier')
    a('L_c3:')
    a(f's_and_b32 s15, {sCNT}, 31'); a('s_cbranch_scc1 L_top')
    a('s_add_u32 s16, s8, s14'); a('s_addc_u32 s17, s9, 0')
    a(f's_cmp_eq_u32 {sCNT}, 64'); a('s_cbranch_scc0 L_top')
    a('s_branch L_le')
    a('L_early:')
    a(f's_cmp_eq_u32 {sCNT}, 3'); a('s_cbranch_scc1 L_e3')
    a(f's_cmp_eq_u32 {sCNT}, 4'); a(f's_cselect_b32 {sMK}, -1, 0')
    a('s_waitcnt vmcnt(32)')
    a('s_branch L_c2')
    a('L_e3:')
    a(f'v_sub_u32 v{vS}, v{vR}, v{vP}')
    a(f'v_add_u32 v{vS}, 32, v{vS}')
    a(f'v_cmp_gt_u32 vcc, 64, v{vS}')
    a(f's_bcnt1_i32_b64 {sOFS}, vcc')
    a('s_bitset1_b32 vcc_hi, 31')
    a(f's_lshr_b32 {sOFS}, {sOFS}, 1'); a(f's_add_u32 {sOFS}, {sOFS}, {(1 << (sh-1)) + ofs}')
    a(f'v_cndmask_b32 v{vPB}, v{vPA}, v{vPB}, vcc')
    if anti: a(f's_and_b32 s29, s2, {anti}')
    a('s_branch L_top')
    a('L_rep:')
    a('s_cmp_eq_u32 s15, 1'); a('s_cbranch_scc1 L_r1')
    a('s_cmp_eq_u32 s15, 2'); a('s_cbranch_scc1 L_r2')
    a(f's_cmp_ge_u32 {sCNT}, {sen + 6}'); a('s_cselect_b32 s15, 128, 0')
    a(f's_cmp_lt_u32 {sCNT}, {sen - 1}'); a('s_cbranch_scc1 L_c2')
    a(f's_cmp_ge_u32 {sCNT}, {last}'); a('s_cbranch_scc1 L_c2')
    a(f's_load_dword {sEN}, s[20:21], s15')
    a('s_branch L_c2')
    a('L_r1:')
    a('s_waitcnt lgkmcnt(0)')
    a(f's_cmp_lg_u32 {sEN}, 1'); a('s_cbranch_scc1 L_c2')
    a(f's_mul_i32 s15, {sCNT}, {spread}'); a(f's_add_u32 s15, s15, {CB}')
    a(f's_mov_b32 {sR}, {2*gb}')
    a(f's_atomic_add {sR}, s[22:23], s15 glc')
    a('s_branch L_c2')
    a('L_r2:')
    a(f's_cmp_lg_u32 {sEN}, 1'); a('s_cbranch_scc1 L_c2')
    a(f's_mov_b32 {sEN}, 0')
    a(f's_ashr_i32 s15, {sB}, {leak}')
    if leak > 1: a(f's_sub_u32 s15, {sB}, s15')
    a(f's_sub_u32 s15, s15, {7*gb}')
    a('s_waitcnt lgkmcnt(0)')
    a(f's_add_u32 s15, s15, {sR}')
    a(f'v_mov_b32 v{vS}, s15')
    a(f'global_store_dword v{vBA}, v{vS}, s[22:23]')
    a('s_branch L_c2')
    for i in order_[1:]:
        variant(i)
        a('s_branch L_se')
    a('L_le:')
    a('s_waitcnt vmcnt(32)'); a('s_barrier')
    if tail: a('s_waitcnt vmcnt(8)'); a('s_barrier')
    a('s_waitcnt vmcnt(0)'); a('s_barrier')
    a('s_endpgm')
    a('L_cons:')
    if stamps: a('s_memrealtime s[52:53]'); a('s_memtime s[50:51]')
    a('s_load_dwordx2 s[12:13], s[0:1], 32')
    a('s_load_dwordx4 s[68:71], s[0:1], 40')
    a(f's_sub_u32 {sC}, {sW}, 1')
    a(f'v_and_b32 v{vL}, 63, v0')
    a('s_mov_b32 s18, 0x4000')
    a('s_mov_b32 s22, 0x100'); a('s_mov_b32 s23, 0x20000')
    a('s_mov_b32 s26, 0x100'); a('s_mov_b32 s27, 0x20000')
    a('s_lshl_b32 s15, s2, 8')
    a(f's_lshl_b32 s14, {sC}, 11')
    a(f's_add_u32 {sWB}, s14, {OMW}')
    a(f's_mov_b32 m0, {sWB}')
    a(f's_and_b32 s39, {sC}, 1'); a('s_lshl_b32 s39, s39, 5')
    a(f'v_xor_b32 v{T}, s39, v{AK}'); a(f'v_xor_b32 v{T+1}, 16, v{T}')
    a(f'v_lshlrev_b32 v{T+2}, 2, v{vL}')
    a(f's_lshl_b32 s39, s2, 3'); a(f's_add_u32 s39, s39, {sC}')
    a('s_waitcnt lgkmcnt(0)')
    a('s_mov_b32 s16, s10'); a('s_mov_b32 s17, s11')
    a('s_add_u32 s20, s4, s15'); a('s_addc_u32 s21, s5, 0')
    a('s_add_u32 s24, s12, s15'); a('s_addc_u32 s25, s13, 0')
    if fold:
        a(f'buffer_load_dwordx4 {q(KR)}, v{T}, {sX}, s14 offen')
        a(f'buffer_load_dwordx4 {q(KR+4)}, v{T+1}, {sX}, s14 offen offset:1024')
    else:
        a(f'buffer_load_dwordx4 v{T}, {sX}, s14 offen lds')
        a(f'buffer_load_dwordx4 v{T+1}, {sX}, s14 offen offset:1024 lds')
    a(f's_cmp_lg_u32 {sC}, 0'); a('s_cbranch_scc1 L_om2')
    a(f's_mov_b32 m0, {QS}')
    a(f'buffer_load_dword v{T+2}, {sQ}, 0 offen lds')
    a('L_om2:')
    if CTL:
        a(f's_cmp_lg_u32 s39, {8*zwg + 7}'); a('s_cbranch_scc1 L_nz')
        a(f'v_mul_u32_u24 v{G}, {spread}, v{vL}'); a(f'v_add_u32 v{G}, {CB}, v{G}'); a(f'v_mov_b32 v{G+1}, {RB}')
        for i in range(NZ):
            if i: a(f'v_add_u32 v{G}, {64*spread}, v{G}')
            a(f'global_store_dword v{G}, v{G+1}, s[70:71] sc0 sc1')
        a('L_nz:')
    a(f'v_mov_b32 v{vCS}, {f32(-0.5 * 128.0 ** -0.5 * 1.4426950408889634)}')
    a(f'v_mov_b32 v{vC1}, {f32(128.0 ** -0.25 * 1.4426950408889634)}')
    a(f'v_xor_b32 v{vY}, v{vG}, v{vJ}'); a(f'v_lshlrev_b32 v{vY}, 4, v{vY}')
    if sq == 'gram':
        a(f'v_lshlrev_b32 v{T}, 2, v{vG}')
        a(f'v_sub_u32 v{T}, v{vJ}, v{T}')
        for r in range(4): a(f'v_cmp_eq_u32 {DM[r]}, {r}, v{T}')
    if sq == 'g4':
        a(f'v_and_b32 v{T}, 3, v{vJ}')
        for r in (0, 2, 3): a(f'v_cmp_eq_u32 {DM[r]}, {r}, v{T}')
    if sps:
        assert not fold and not perm
        a(f'v_and_b32 v{T}, 3, v{vJ}'); a(f'v_cmp_eq_u32 vcc, 0, v{T}'); a(f'v_cndmask_b32 v{vCS}, 0, v{vCS}, vcc')
    a(f'v_and_b32 v{T}, 3, v{vJ}'); a(f'v_lshrrev_b32 v{T+1}, 2, v{vJ}')
    a(f'v_lshl_add_u32 v{T+2}, v{T}, 2, v{T+1}')
    a(f'v_lshl_add_u32 v{vWA}, v{T+2}, 2, {sWB}')
    a(f'v_lshl_add_u32 v{AK}, v{T+2}, 8, v{vY}')
    for t in range(1, 4): a(f'v_xor_b32 v{AK+t}, {64*t}, v{AK}')
    for t in range(4): a(f'v_add_u32 v{T+t}, {OMW}, v{AK+t}')
    a(f'v_lshlrev_b32 v{T+4}, 4, v{vG}')
    a(f'v_add_u32 v{T+4}, {QS}, v{T+4}')
    a(f's_lshl_b32 {sSLOT}, {sC}, 12')
    a(f's_mov_b32 {sMODE}, 0')
    a(f's_mov_b32 {sCNT}, 32')
    stamp(1)
    if CTL: a(f'v_lshlrev_b32 v{G+2}, 7, v{vL}'); a(f'v_mov_b32 v{G+3}, 1')
    a('s_waitcnt vmcnt(0)')
    if CTL:
        a(f's_cmp_lg_u32 s39, {8*zwg + 7}'); a('s_cbranch_scc1 L_nf')
        a('s_mov_b64 exec, 3')
        a(f'global_store_dword v{G+2}, v{G+3}, s[68:69] sc0 sc1')
        a('s_mov_b64 exec, -1')
        a('L_nf:')
    if fold:
        for i in range(8):
            a(f'v_lshlrev_b32 v{P+2*i}, 16, v{KR+i}'); a(f'v_and_b32 v{P+2*i+1}, 0xffff0000, v{KR+i}')
        for i in range(16): a(f'v_mul_f32 v{P+i}, v{vC1}, v{P+i}')
        for i in range(8): a(f'v_cvt_pk_bf16_f32 v{KR+i}, v{P+2*i}, v{P+2*i+1}')
        a(f'v_lshl_add_u32 v{T+5}, v{vL}, 4, {sWB}')
        a(f'ds_write_b128 v{T+5}, {q(KR)}'); a(f'ds_write_b128 v{T+5}, {q(KR+4)} offset:1024')
        a('s_waitcnt lgkmcnt(0)')
    if touch:
        a('s_lshl_b32 s14, s2, 20'); a('s_add_u32 s8, s8, s14'); a('s_addc_u32 s9, s9, 0')
        a(f'v_mov_b32 v{T+5}, 0')
        a(f'global_load_dword v{vDUM}, v{T+5}, s[8:9] nt')
        if touch2: a(f'buffer_load_dword v{vDUM}, v{T+5}, {sOUT}, 0 offen nt')
    a('s_barrier')
    stamp(2)
    for t in range(4): a(f'ds_read_b128 {q(KR+4*t)}, v{T+4} offset:{64*t}')
    for t in range(4):
        for mt in range(4): a(f'ds_read_b128 {q(OM+16*t+4*mt)}, v{T+t} offset:{4096*mt}')
    a('s_waitcnt lgkmcnt(0)')
    a('s_branch L_front')
    a('L_phiq:')
    a(f'v_mov_b32 v{T+1}, {f32(1e-6)}')
    a(f'v_mov_b32 v{T+2}, {f32(0.125)}')
    for i in range(16): a(f'v_fma_f32 v{P+i}, v{P+i}, v{T+2}, v{T+1}')
    for i in range(16): a(f'v_mul_f32 v{P+i}, v{P+i}, v{T+2}')
    for i in range(8): a(f'v_cvt_pk_bf16_f32 v{PHI+i}, v{P+2*i}, v{P+2*i+1}')
    a(f'v_mov_b32 v{T+4}, 0x3f803f80')
    for i in range(5, 8): a(f'v_mov_b32 v{T+i}, v{T+4}')
    a(f'v_mfma_f32_16x16x32_bf16 {q(W)}, {q(T+4)}, {q(PHI)}, 0')
    a(f'v_mfma_f32_16x16x32_bf16 {q(W)}, {q(T+4)}, {q(PHI+4)}, {q(W)}')
    if spw:
        a(f'v_and_b32 v{T}, {3 if spw == 1 else 15}, v{vJ}'); a(f'v_cmp_eq_u32 vcc, 0, v{T}')
        for i in range(8): a(f'v_cndmask_b32 v{PHI+i}, 0, v{PHI+i}, vcc')
    a(f'v_mul_f32 v{T}, {f32(8e-6)}, v{W}')
    a(f's_mov_b32 {sMODE}, 1')
    a(f'v_readfirstlane_b32 {sC0}, v{T}')
    stamp(3)
    if stamps: a('s_waitcnt lgkmcnt(0)')
    a('s_branch L_k1')
    a('.p2align 3')
    a('L_k:')
    a('s_barrier')
    def wr_w():
        if spw == 2: a('s_mov_b64 exec, 0xffff')
        a(f'ds_write_b32 v{vWA}, v{W}')
        if spw == 2: a('s_mov_b64 exec, -1')
    wr_w()
    a(f'v_add_u32 v{vWA}, 64, v{vWA}')
    a('L_k1:')
    for t in range(4):
        a(f'v_add_u32 v{T+t}, {sSLOT}, v{AK+t}')
        a(f'ds_read_b128 {q(KR+4*t)}, v{T+t}')
    a(f's_add_u32 {sSLOT}, {sSLOT}, 0x8000'); a(f's_and_b32 {sSLOT}, {sSLOT}, 0x1ffff')
    a('L_front:')
    def sq_ops(t):
        if sq == 'gram': return [f'v_mfma_f32_16x16x32_bf16 {q(G)}, {q(KR+4*t)}, {q(KR+4*t)}, ' + ('0' if t == 0 else q(G))]
        if sq == 'g4': return [f'v_mfma_f32_4x4x4_16b_bf16 {q(G)}, v[{KR+4*t+2*h}:{KR+4*t+2*h+1}], v[{KR+4*t+2*h}:{KR+4*t+2*h+1}], ' + ('0' if t == 0 and h == 0 else q(G)) for h in range(2)]
        return [f'v_dot2_f32_bf16 v{T}, v{KR+4*t+d}, v{KR+4*t+d}, ' + ('0' if t == 0 and d == 0 else f'v{T}') for d in range(4)]
    def sq_fin():
        if sq != 'dot':
            a(f'v_cndmask_b32 v{T}, ' + ('0' if sq == 'gram' else f'v{G+1}') + f', v{G}, {DM[0]}')
            for r in range(1 if sq == 'gram' else 2, 4): a(f'v_cndmask_b32 v{T}, v{T}, v{G+r}, {DM[r]}')
        if perm:
            a(f'v_mov_b32 v{T+1}, v{T}'); a(f'v_permlane32_swap_b32 v{T}, v{T+1}'); a(f'v_add_f32 v{T}, v{T}, v{T+1}')
            a(f'v_mov_b32 v{T+1}, v{T}'); a(f'v_permlane16_swap_b32 v{T}, v{T+1}'); a(f'v_add_f32 v{T}, v{T}, v{T+1}')
            a(f'v_mul_f32 v{S}, v{vCS}, v{T}')
        else:
            a(f'v_mfma_f32_16x16x4_f32 {q(S)}, v{vCS}, v{T}, 0')
    def pm(t, mt): return f'v_mfma_f32_16x16x32_bf16 {q(P+4*mt)}, {q(OM+16*t+4*mt)}, {q(KR+4*t)}, ' + ((q(S) if fold else '0') if t == 0 else q(P+4*mt))
    seq = [(t, mt) for mt in range(4) for t in range(4)] if chain else [(t, mt) for t in range(4) for mt in range(4)]
    if nocomp in (1, 2): seq = []
    if fold or chain or sep:
        for t in range(4):
            a(f's_waitcnt lgkmcnt({3-t})')
            for x in sq_ops(t): a(x)
        sq_fin()
        for h in range(4*heavy): a(f'v_mfma_f32_16x16x32_bf16 {q(E)}, {q(OM+4*h)}, {q(KR+4*(h&3))}, 0')
        for t, mt in seq: a(pm(t, mt))
    else:
        for t in range(4):
            a(f's_waitcnt lgkmcnt({3-t})')
            for h in range(heavy): a(f'v_mfma_f32_16x16x32_bf16 {q(E)}, {q(OM+16*t+4*h)}, {q(KR+4*t)}, 0')
            so_ = sq_ops(t)
            for mt in range(4):
                if mt < len(so_): a(so_[mt])
                if (t, mt) in seq: a(pm(t, mt))
        sq_fin()
    if nocomp not in (1, 3):
        if not fold:
            for i in range(16): a(f'v_fma_f32 v{P+i}, v{P+i}, v{vC1}, v{S}')
        for i in range(16): a(f'v_exp_f32 v{P+i}, v{P+i}')
    a(f's_cmp_eq_u32 {sMODE}, 0'); a('s_cbranch_scc1 L_phiq')
    for i in range(8): a(f'v_cvt_pk_bf16_f32 v{E+i}, v{P+2*i}, v{P+2*i+1}')
    a(f'v_mfma_f32_16x16x32_bf16 {q(W)}, {q(PHI)}, {q(E)}, 0')
    a(f's_sub_u32 {sCNT}, {sCNT}, 1')
    a(f'v_mfma_f32_16x16x32_bf16 {q(W)}, {q(PHI+4)}, {q(E+4)}, {q(W)}')
    a(f's_cmp_lg_u32 {sCNT}, 0'); a('s_cbranch_scc1 L_k')
    a('s_barrier')
    wr_w()
    stamp(4)
    for r in range(4): a(f'v_mov_b32 v{ACC+r}, 0')
    a(f'v_mov_b32 v{vDEN}, 0'); a(f'v_mov_b32 v{vONE}, 1.0')
    a(f'v_and_b32 v{T}, 1, v{vJ}'); a(f'v_lshlrev_b32 v{T}, 4, v{T}')
    a(f'v_mov_b32 v{T+1}, 0xffff'); a(f'v_lshlrev_b32 v{T}, v{T}, v{T+1}')
    a(f'v_bfe_u32 v{T+1}, v{vJ}, 1, 2')
    for n in range(4): a(f'v_cmp_eq_u32 {DM[n]}, {n}, v{T+1}')
    a(f'v_lshrrev_b32 v{T+2}, 3, v{vJ}')
    a(f'v_cvt_f32_u32 v{vM01}, v{T+2}')
    for n in range(4): a(f'v_cndmask_b32 v{MASK+n}, 0, v{T}, {DM[n]}')
    a(f'v_lshl_add_u32 v{AK}, v{vG}, 10, v{vY}')
    for t in range(1, 4): a(f'v_xor_b32 v{AK+t}, {64*t + 256*t}, v{AK}')
    a(f'v_lshl_add_u32 v{vWA}, v{vG}, 4, {sWB}')
    a(f's_mov_b32 {sCNT}, 32')
    if fin:
        a(f'v_and_b32 v{FR}, 1, v{vG}'); a(f'v_lshlrev_b32 v{FR}, 3, v{FR}')
        a(f'v_lshl_add_u32 v{FR}, v{vJ}, 4, v{FR}')
        a(f'v_lshrrev_b32 v{FR+2}, 1, v{vG}')
        a(f'v_lshl_add_u32 v{FR+2}, v{FR+2}, 2, v{FR}')
    else:
        a(f'v_lshrrev_b32 v{FR}, 2, v{vL}')
        a(f'v_bfe_u32 v{FR+1}, v{vL}, 1, 1')
        a(f'v_lshl_add_u32 v{FR}, v{FR+1}, 4, v{FR}')
        a(f'v_and_b32 v{FR+1}, 1, v{vL}')
        a(f'v_lshlrev_b32 v{FR+1}, 3, v{FR+1}')
        a(f'v_lshl_add_u32 v{FR}, v{FR}, 4, v{FR+1}')
        a(f'v_lshlrev_b32 v{FR+2}, 2, v{vL}')
    a(f'v_mov_b32 v{FR+1}, {DENA}')
    a(f's_lshl_b32 s15, {sC}, 10')
    a(f'v_lshl_add_u32 v{FR+3}, v{vL}, 4, s15')
    a(f's_lshl_b32 s15, {sC}, 2'); a(f's_add_u32 s15, s15, {DENA}')
    a(f'v_mov_b32 v{G}, s15')
    if stamps: a('s_waitcnt lgkmcnt(0)')
    a('.p2align 3')
    a('L_v:')
    a(f'ds_read_b128 {q(W4)}, v{vWA}')
    a(f'v_add_u32 v{vWA}, 64, v{vWA}')
    for t in range(4): a(f'v_add_u32 v{T+4+t}, {sSLOT}, v{AK+t}')
    a(f's_add_u32 {sSLOT}, {sSLOT}, 0x8000'); a(f's_and_b32 {sSLOT}, {sSLOT}, 0x1ffff')
    a('s_waitcnt lgkmcnt(0)')
    for r in range(4): a(f'v_add_f32 v{W4+r}, {sC0}, v{W4+r}')
    for r in range(4): a(f'v_cvt_pk_bf16_f32 v{T+r}, 0, v{W4+r}')
    for r in range(4): a(f'v_fma_f32 v{T+r}, -v{T+r}, v{vM01}, v{W4+r}')
    a(f'v_add_f32 v{W4}, v{W4}, v{W4+1}'); a(f'v_add_f32 v{W4+2}, v{W4+2}, v{W4+3}')
    a(f'v_add_f32 v{vDEN}, v{vDEN}, v{W4}'); a(f'v_add_f32 v{vDEN}, v{vDEN}, v{W4+2}')
    for r in range(4): a(f'v_cvt_pk_bf16_f32 v{T+r}, v{T+r}, v{T+r}')
    a(f'v_mfma_f32_16x16x4_f32 {q(S)}, v{vONE}, v{vDEN}, 0')
    for r in range(4):
        for n in range(4): a(f'v_and_b32 v{P+4*r+n}, v{T+r}, v{MASK+n}')
    a(f'ds_write_b32 v{G}, v{S}')
    a(f's_cmp_eq_u32 {sCNT}, 32'); a('s_cbranch_scc1 L_v1')
    if fin: a('s_waitcnt lgkmcnt(0)')
    a('s_barrier')
    a('L_v1:')
    for t in range(4): a(f'ds_read_b128 {q(KR+4*t)}, v{T+4+t}')
    a(f's_sub_u32 {sCNT}, {sCNT}, 1')
    for t in range(4):
        a(f's_waitcnt lgkmcnt({3-t})')
        a(f'v_mfma_f32_16x16x32_bf16 {q(ACC)}, {q(P+4*t)}, {q(KR+4*t)}, {q(ACC)}')
    if warm:
        a(f's_cmp_eq_u32 {sCNT}, 29'); a('s_cbranch_scc1 L_fin')
    a(f's_cmp_lg_u32 {sCNT}, 0'); a('s_cbranch_scc1 L_v')
    stamp(5)
    if stamps == 2: a('s_waitcnt lgkmcnt(0)')
    D0 = E; R0 = FR + 4
    def pkadd(d, x, y): a(f'v_pk_add_f32 v[{d}:{d+1}], v[{x}:{x+1}], v[{y}:{y+1}]')
    if fin:
        a(f's_cmp_eq_u32 {sC}, 0'); a('s_cbranch_scc1 L_fin')
        a(f'ds_write_b128 v{FR+3}, {q(ACC)}')
        a('s_waitcnt lgkmcnt(0)')
        a('s_barrier')
        a('s_endpgm')
        a('L_fin:')
        for i in range(2): a(f'ds_read_b128 {q(D0+4*i)}, v{FR+1} offset:{16*i}')
        if warm: a(f's_cmp_lg_u32 {sCNT}, 0'); a('s_cbranch_scc1 L_f1')
        a('s_barrier')
        a('L_f1:')
        for w in range(1, 8): a(f'ds_read_b128 {q(R0+4*w)}, v{FR+3} offset:{1024*w}')
        a('s_waitcnt lgkmcnt(7)')
        pkadd(D0, D0, D0+2); pkadd(D0+4, D0+4, D0+6); pkadd(D0, D0, D0+4)
        a(f'v_add_f32 v{D0}, v{D0}, v{D0+1}')
        a(f'v_add_f32 v{D0}, {f32(1e-6)}, v{D0}')
        a(f'v_rcp_f32 v{D0+1}, v{D0}')
        for w in range(1, 8):
            a(f's_waitcnt lgkmcnt({7-w})')
            src = ACC if w == 1 else R0
            pkadd(R0, src, R0+4*w); pkadd(R0+2, src+2, R0+4*w+2)
        a(f'v_permlane32_swap_b32 v{R0}, v{R0+2}')
        a(f'v_permlane32_swap_b32 v{R0+1}, v{R0+3}')
        pkadd(R0, R0, R0+2)
    else:
        a(f'ds_write_b128 v{FR+3}, {q(ACC)}')
        a('s_waitcnt lgkmcnt(0)')
        a('s_barrier')
        a(f's_cmp_lg_u32 {sC}, 0'); a('s_cbranch_scc1 L_done')
        a('L_fin:')
        for i in range(2): a(f'ds_read_b128 {q(D0+4*i)}, v{FR+1} offset:{16*i}')
        for w in range(8): a(f'ds_read2st64_b64 {q(R0+4*w)}, v{FR} offset0:{2*w} offset1:{2*w+1}')
        a('s_waitcnt lgkmcnt(8)')
        pkadd(D0, D0, D0+2); pkadd(D0+4, D0+4, D0+6); pkadd(D0, D0, D0+4)
        a(f'v_add_f32 v{D0}, v{D0}, v{D0+1}')
        a(f'v_add_f32 v{D0}, {f32(1e-6)}, v{D0}')
        a(f'v_rcp_f32 v{D0+1}, v{D0}')
        for w in range(8):
            if w % 2 == 0: a(f's_waitcnt lgkmcnt({6-w})')
            pkadd(R0+4*w, R0+4*w, R0+4*w+2)
            if w % 2 == 1: pkadd(R0+4*w-4, R0+4*w-4, R0+4*w)
            if w % 4 == 3: pkadd(R0+4*w-12, R0+4*w-12, R0+4*w-4)
        pkadd(R0, R0, R0+16)
    a(f'v_mul_f32 v{R0}, v{R0}, v{D0+1}'); a(f'v_mul_f32 v{R0+1}, v{R0+1}, v{D0+1}')
    a(f'v_cvt_pk_bf16_f32 v{R0}, v{R0}, v{R0+1}')
    if warm:
        a(f's_cmp_lg_u32 {sCNT}, 0'); a('s_cbranch_scc1 L_v')
    a(f'buffer_store_dword v{R0}, v{FR+2}, {sOUT}, 0 offen {opol}')
    if stamps in (1, 3):
        if stamps == 3: a('s_sub_u32 s62, s60, s52')
        a('s_memrealtime s[66:67]'); a('s_memtime s[48:49]')
        a('s_getreg_b32 s60, hwreg(HW_REG_XCC_ID)'); a('s_getreg_b32 s61, hwreg(HW_REG_HW_ID)')
        a('s_waitcnt lgkmcnt(0)')
        a('s_sub_u32 s48, s48, s50')
        if stamps == 3: a('s_mov_b32 s61, s62')
        for i, s in enumerate(['s52','s53','s66','s67','s60','s61','s48','0']): a(f'v_mov_b32 v{P+i}, {s}')
        a('s_lshl_b32 s15, s2, 5'); a(f'v_mov_b32 v{T}, s15')
        a('s_mov_b64 exec, 1')
        a(f'global_store_dwordx4 v{T}, {q(P)}, s[70:71]')
        a(f'global_store_dwordx4 v{T}, {q(P+4)}, s[70:71] offset:16')
    if stamps == 2:
        a('s_memrealtime s[64:65]'); a('s_waitcnt lgkmcnt(0)')
        a('s_and_b32 s15, s2, 31'); a('s_cmp_lg_u32 s15, 5'); a('s_cbranch_scc1 L_done')
        a('s_mov_b64 exec, 1'); a(f'v_mov_b32 v{T}, 0')
        for i in range(1, 7):
            a(f's_sub_u32 s15, s{52+2*i}, s52'); a(f'v_mov_b32 v{P+i}, s15')
            a(f'global_atomic_add v{T}, v{P+i}, s[68:69] offset:{4*i} sc1')
    a('L_done:')
    a('s_endpgm')
    body = a.finalize()
    tl = f""".section .rodata,"a"
.p2align 6
.amdhsa_kernel {KN}
  .amdhsa_next_free_vgpr {NV}
  .amdhsa_next_free_sgpr 72
  .amdhsa_accum_offset {(NV+3)//4*4}
  .amdhsa_group_segment_fixed_size 0
  .amdhsa_kernarg_size 56
  .amdhsa_user_sgpr_count 2
  .amdhsa_user_sgpr_kernarg_segment_ptr 1
  .amdhsa_system_sgpr_workgroup_id_x 1
  .amdhsa_float_denorm_mode_32 3
.end_amdhsa_kernel
"""
    sys.stderr.write(f'NV={NV} nops={a.nops}\n')
    return body + tl

if __name__ == '__main__':
    out = []
    for spec in sys.argv[1:]:
        kw = {}
        name = None
        for kv in spec.split(','):
            if not kv: continue
            k, v = kv.split('=')
            if k == 'out': name = v; continue
            if k not in ('wins', 'ct', 'order', 'so'):
                try: v = ast.literal_eval(v)
                except Exception: v = v.replace('+', ' ')
            kw[k] = v
        name = name or ('scratch/k/d_' + spec.replace('=', '').replace(',', '_').replace('+', '') + '.s')
        open(name, 'w').write(gen(**kw))
        out.append(name)
    print(' '.join(out))
```

```python
import sys, struct, ast
sys.path.insert(0, 'gen')
from asmlib import Asm
KN = 'standalone__linear_kernel_rfa__decode_kernel'
def f32(x): return '0x%08x' % struct.unpack('<I', struct.pack('<f', x))[0]

HEADER = """; Kernarg layout for this problem (56 bytes, ptrs only, base s[0:1]):
;   offset  32: d_out     shape=(8, 32, 1, 128) dtype=bfloat16 (2 bytes/elem)
"""
DOC = """;
; out = (phi_q . phi_k^T) V / (phi_q . phi_k^T 1 + 1e-6): with one query the [m,d] state is never formed, every key
"""

def gen(lo=18, hi=27, base=21, sh=4, gb=3, ofs=6, sen=6, last=61, n0=5, ev=3, so='ahijc', spread=768,
        stamps=0, touch=1, prio=3, zwg=0, extra=1, omlate=0, heavy=0, asym=0):
    bitof = lambda ch: int(ch) if ch.isdigit() else ord(ch) - ord('a') + 10
    ib = [11, 13]; tb0 = 14
    IOFF = [0, 1 << ib[0], 1 << ib[1], (1 << ib[0]) + (1 << ib[1])]
    SO = [bitof(c) for c in so]
    assert sorted(SO + ib + [tb0, tb0+1, tb0+2]) == list(range(10, 20))
    WINS = list(range(lo, hi + 1))
    CB = 16384
    PB = CB + 64*spread
    PTAG = 0x5c3a0000
    OMW = 131072; QS = OMW + 16384; DENA = QS + 256; C0A = DENA + 64; PHA = QS + 512; LDS = PHA + 2048
    a = Asm()
    def c(t): a.raw('; ' + t)
    a.raw(HEADER.rstrip())
    a.raw(f'; @launch grid=(256,1,1) block=(576,1,1) lds={LDS}')
    a.raw(DOC.rstrip())
    a.raw('.amdgcn_target "amdgcn-amd-amdhsa--gfx950"')
    a.raw('.text'); a.raw(f'.globl {KN}'); a.raw('.p2align 8'); a.raw(f'.type {KN},@function')
    a(f'{KN}:')
    nxt = [1]
    def V(n=1, al=1):
        b = (nxt[0] + al - 1)//al*al; nxt[0] = b + n; return b
    vL, vJ, vG, vY, vWA, vCS, vDUM = [V() for _ in range(7)]
    AK = V(4, 4); T = V(8, 4); G = V(4, 4); S = V(4, 4); PHI = V(8, 4); E = V(8, 4)
    KR = V(16, 4); P = V(16, 4); OM = V(64, 4)
    NV = nxt[0]
    W = S
    ACC = OM; MASK = OM + 4; vM01 = OM + 8; vDEN = OM + 9; vONE = OM + 10; W4 = OM + 12; FR = OM + 16
    def q(b): return f'v[{b}:{b+3}]'
    sX = 's[16:19]'
    sQ, sOUT = 's[20:23]', 's[24:27]'
    sW, sC, sSLOT, sCNT, sC0, sMODE, sOFF, sWB = 's3', 's28', 's29', 's30', 's32', 's36', 's37', 's38'
    DM = ['s[40:41]', 's[42:43]', 's[44:45]', 's[46:47]']
    a('s_load_dwordx8 s[4:11], s[0:1], 0')
    a(f'v_readfirstlane_b32 {sW}, v0')
    c('LDS image of a tile: load n, lane (g = lane>>4, p = lane&15) brings chunk p ^ (4g+n) of tile row j = 4g+n')
    a(f'v_and_b32 v{T}, 48, v0')
    a(f'v_lshlrev_b32 v{AK}, 4, v0')
    a(f'v_lshlrev_b32 v{T}, 2, v{T}')
    a('s_lshr_b32 s15, s2, 8'); a('s_cbranch_scc1 L_done')
    a(f'v_xor_b32 v{AK}, v{AK}, v{T}')
    a('s_lshl_b32 s19, 1, 17')
    a(f's_lshr_b32 {sW}, {sW}, 6'); a('s_cbranch_scc1 L_cons')
    c('================ loader wave')
    for n in range(1, 4): a(f'v_xor_b32 v{AK+n}, {16*n + IOFF[n] - 1024*n}, v{AK}')
    a('s_lshl_b32 s14, s2, 20')
    a('s_lshl_b32 s18, 1, 20')
    a('s_mov_b32 m0, 0'); a(f's_mov_b32 {sOFF}, 0')
    a('s_waitcnt lgkmcnt(0)')
    a('s_add_u32 s16, s6, s14'); a('s_addc_u32 s17, s7, 0')
    vPA, vPB, vBA, vP, vR, vS = T, T+1, T+2, T+3, T+4, T+5
    sVAR, sTURN, sR, sEN, sB, sN, sSL, sOFS, sMK, sS = 's31', 's32', 's33', 's34', 's35', 's36', 's24', 's25', 's26', 's27'
    def dma(n): a(f'buffer_load_dwordx4 v{AK+n}, {sX}, {sOFF} offen offset:{1024*n} nt lds')
    def load(n, w):
        k = w - 1
        im = k + (k - n)//4 + 1 + extra
        assert im <= 47
        a(f's_waitcnt vmcnt({im})'); dma(n)
    a('L_s:')
    for n in range(4): dma(n)
    a('s_add_u32 m0, m0, 4096')
    a(f's_add_u32 {sOFF}, {sOFF}, {1 << tb0}')
    a(f's_cmp_lg_u32 {sOFF}, {hex(n0 << tb0)}'); a('s_cbranch_scc1 L_s')
    assert n0 in (4, 5, 6)
    c('balancing set-up while the first loads are in flight: table of this XCD, slot of this CU')
    a('s_load_dwordx4 s[20:23], s[0:1], 40')
    if prio: a(f's_setprio {prio}')
    a('s_getreg_b32 s15, hwreg(HW_REG_XCC_ID, 0, 3)')
    a(f's_getreg_b32 {sSL}, hwreg(HW_REG_HW_ID, 8, 4)')
    a('s_getreg_b32 s13, hwreg(HW_REG_HW_ID, 13, 2)')
    a('s_mul_i32 s15, s15, 1280'); a(f's_add_u32 s15, s15, {PB}')
    a(f's_lshl4_add_u32 {sSL}, s13, {sSL}')
    a(f'v_lshl_add_u32 v{vPB}, v0, 2, s15')
    a(f's_lshl2_add_u32 s13, {sSL}, s15'); a(f'v_mov_b32 v{vPA}, s13')
    a('s_add_u32 s15, s15, 252'); a(f'v_mov_b32 v{vBA}, s15')
    a(f'v_mov_b32 v{vP}, {hex(PTAG + n0)}'); a(f'v_mov_b32 v{vR}, 0')
    a(f's_lshr_b32 {sTURN}, s2, 3'); a(f's_lshl_b32 {sTURN}, {sTURN}, 1')
    a(f's_mov_b32 {sMK}, 0'); a(f's_mov_b32 {sOFS}, 0'); a(f's_mov_b32 {sCNT}, 0'); a(f's_mov_b32 {sEN}, 0')
    a('s_waitcnt lgkmcnt(0)')
    a(f'global_store_dword v{vBA}, v{vR}, s[22:23]')
    bi = WINS.index(base)
    order_ = [bi] + [i for d in range(1, len(WINS)) for i in (bi + d, bi - d) if 0 <= i < len(WINS)]
    def variant(i):
        w = WINS[i]
        c(f'half a stage (4 tiles) with {w} loads in flight')
        a(f'L_w{i}:')
        for n in range(4): load(n, w)
        a(f'v_add_u32 v{vP}, 1, v{vP}')
        a('s_add_u32 m0, m0, 4096')
        a(f's_add_u32 {sOFF}, {sOFF}, {1 << tb0}')
        a(f'global_store_dword v{vPA}, v{vP}, s[22:23]')
        a(f's_andn2_b32 s15, {hex(3 << tb0)}, {sOFF}')
        a(f's_cbranch_scc1 L_w{i}')
        load(0, w)
        a(f'v_mov_b32 v{vS}, v{vR}')
        a(f'v_readlane_b32 {sN}, v{vS}, {sSL}')
        a(f'v_readlane_b32 {sB}, v{vS}, 63')
        a(f'v_subrev_u32 v{vS}, {sN}, v{vS}')
        a(f'v_writelane_b32 v{vS}, 0, 63')
        load(1, w)
        for x in (1, 2): a(f'v_add_u32_dpp v{vS}, v{vS}, v{vS} row_shr:{x} row_mask:0xf bank_mask:0xf bound_ctrl:1')
        load(2, w)
        for x in (4, 8): a(f'v_add_u32_dpp v{vS}, v{vS}, v{vS} row_shr:{x} row_mask:0xf bank_mask:0xf bound_ctrl:1')
        load(3, w)
        a(f'v_add_u32_dpp v{vS}, v{vS}, v{vS} row_bcast:15 row_mask:0xa bank_mask:0xf')
        a(f'v_add_u32 v{vP}, 1, v{vP}')
        a('s_add_u32 m0, m0, 4096')
        a(f'v_add_u32_dpp v{vS}, v{vS}, v{vS} row_bcast:31 row_mask:0xc bank_mask:0xf')
    variant(order_[0])
    a('L_se:')
    a(f'global_store_dword v{vPA}, v{vP}, s[22:23]')
    a(f'v_readlane_b32 {sS}, v{vS}, 63')
    a(f'global_load_dword v{vR}, v{vPB}, s[22:23] nt')
    a(f's_add_u32 {sOFF}, {sOFF}, {1 << tb0}')
    a(f's_add_u32 {sS}, {sS}, {sB}')
    a(f's_add_u32 {sS}, {sS}, {sOFS}')
    a(f's_and_b32 {sS}, {sS}, {sMK}')
    a(f's_ashr_i32 {sVAR}, {sS}, {sh}')
    a(f's_bitcmp1_b32 {sOFF}, {tb0+2}'); a('s_cbranch_scc0 L_st')
    a('L_top:')
    up, dn = len(WINS) - 1 - bi, bi
    for i in order_:
        d = i - bi
        if i == order_[-1]: a(f's_branch L_w{i}'); break
        if d == up and d > 0: a(f's_cmp_ge_i32 {sVAR}, {d}')
        elif d == -dn and d < 0: a(f's_cmp_le_i32 {sVAR}, {d}')
        else: a(f's_cmp_eq_i32 {sVAR}, {d}')
        a(f's_cbranch_scc1 L_w{i}')
    c('end of a stage: next stage offset (stage bits -> address bits ' + ','.join(map(str, SO)) + '), hand-over barrier')
    a('L_st:')
    a('s_and_b32 m0, m0, 0x1ffff')
    a(f's_add_u32 {sCNT}, {sCNT}, 1')
    groups = {}
    for k, b in enumerate(SO): groups.setdefault(b - k, []).append(b)
    left = sorted(groups); first = True
    while left:
        pick = [left[0]]
        for x in left[1:]:
            if x - pick[-1] >= 7: pick.append(x)
        left = [x for x in left if x not in pick]
        d = sOFF if first else 's15'
        if len(pick) > 1: a(f's_mul_i32 {d}, {sCNT}, {hex(sum(1 << x for x in pick))}')
        else: a(f's_lshl_b32 {d}, {sCNT}, {pick[0]}')
        a(f's_and_b32 {d}, {d}, {hex(sum(1 << b for x in pick for b in groups[x]))}')
        if not first: a(f's_or_b32 {sOFF}, {sOFF}, s15')
        first = False
    a(f's_cmp_le_u32 {sCNT}, 4'); a('s_cbranch_scc1 L_early')
    a(f's_sub_u32 s15, {sCNT}, {sTURN}'); a('s_add_u32 s15, s15, 1')
    a('s_cmp_le_u32 s15, 2'); a('s_cbranch_scc1 L_rep')
    a('L_c2:')
    a('s_barrier')
    a(f's_and_b32 s15, {sCNT}, 31'); a('s_cbranch_scc1 L_top')
    a('s_add_u32 s16, s8, s14'); a('s_addc_u32 s17, s9, 0')
    a(f's_cmp_eq_u32 {sCNT}, 64'); a('s_cbranch_scc0 L_top')
    a('s_waitcnt vmcnt(32)'); a('s_barrier')
    a('s_waitcnt vmcnt(0)'); a('s_barrier')
    a('s_endpgm')
    a('L_early:')
    a(f's_cmp_eq_u32 {sCNT}, {ev}'); a('s_cbranch_scc1 L_e3')
    a(f's_cmp_gt_u32 {sCNT}, {ev}'); a(f's_cselect_b32 {sMK}, -1, 0')
    a('L_e4:')
    a(f's_bitcmp1_b32 {sCNT}, 0'); a('s_cbranch_scc1 L_top')
    a('s_waitcnt vmcnt(32)')
    a('s_branch L_c2')
    c('table slots that do not hold a running neighbour\'s count are redirected to the own slot')
    a('L_e3:')
    a(f'v_sub_u32 v{vS}, v{vR}, v{vP}')
    a(f'v_add_u32 v{vS}, 32, v{vS}')
    a(f'v_cmp_gt_u32 vcc, 64, v{vS}')
    a(f's_bcnt1_i32_b64 {sOFS}, vcc')
    a('s_bitset1_b32 vcc_hi, 31')
    a(f's_lshr_b32 {sOFS}, {sOFS}, 1'); a(f's_add_u32 {sOFS}, {sOFS}, {(1 << (sh-1)) + ofs}')
    a(f'v_cndmask_b32 v{vPB}, v{vPA}, v{vPB}, vcc')
    a('s_branch L_e4')
    c('this workgroup\'s turn: read the flag, then draw the arrival rank, then update the XCD bias')
    a('L_rep:')
    a('s_cmp_eq_u32 s15, 1'); a('s_cbranch_scc1 L_r1')
    a('s_cmp_eq_u32 s15, 2'); a('s_cbranch_scc1 L_r2')
    a(f's_cmp_ge_u32 {sCNT}, {sen + 6}'); a('s_cselect_b32 s15, 128, 0')
    if sen > 6: a(f's_cmp_lt_u32 {sCNT}, {sen - 1}'); a('s_cbranch_scc1 L_c2')
    a(f's_cmp_ge_u32 {sCNT}, {last}'); a('s_cbranch_scc1 L_c2')
    a(f's_load_dword {sEN}, s[20:21], s15')
    a('s_branch L_c2')
    a('L_r1:')
    a('s_waitcnt lgkmcnt(0)')
    a(f's_cmp_lg_u32 {sEN}, 1'); a('s_cbranch_scc1 L_c2')
    a(f's_mul_i32 s15, {sCNT}, {spread}'); a(f's_add_u32 s15, s15, {CB}')
    a(f's_mov_b32 {sR}, {2*gb}')
    a(f's_atomic_add {sR}, s[22:23], s15 glc')
    a('s_branch L_c2')
    a('L_r2:')
    a(f's_cmp_lg_u32 {sEN}, 1'); a('s_cbranch_scc1 L_c2')
    a(f's_ashr_i32 s15, {sB}, 1'); a(f's_sub_u32 s15, s15, {7*gb}')
    if asym:
        a(f's_ashr_i32 s13, {sB}, 2')
        if asym == 1: a('s_min_i32 s13, s13, 0')
        a('s_add_u32 s15, s15, s13')
    a('s_waitcnt lgkmcnt(0)')
    a(f's_add_u32 s15, s15, {sR}')
    a(f'v_mov_b32 v{vS}, s15')
    a(f'global_store_dword v{vBA}, v{vS}, s[22:23]')
    a('s_branch L_c2')
    for i in order_[1:]:
        variant(i)
        a('s_branch L_se')
    c('================ consumer waves')
    a('L_cons:')
    if stamps: a('s_memrealtime s[52:53]'); a('s_memtime s[50:51]')
    a('s_load_dwordx2 s[12:13], s[0:1], 32')
    a('s_load_dwordx4 s[68:71], s[0:1], 40')
    a(f's_sub_u32 {sC}, {sW}, 1')
    a(f'v_and_b32 v{vL}, 63, v0')
    a(f'v_and_b32 v{vJ}, 15, v0')
    a(f'v_lshrrev_b32 v{vG}, 4, v{vL}')
    a(f'v_and_b32 v{AK}, 0x3ff, v{AK}')
    a('s_mov_b32 s18, 0x4000')
    a('s_mov_b32 s22, 0x100'); a('s_mov_b32 s23, 0x20000')
    a('s_mov_b32 s26, 0x100'); a('s_mov_b32 s27, 0x20000')
    a('s_lshl_b32 s15, s2, 8')
    a(f's_lshl_b32 s14, {sC}, 11')
    a(f's_add_u32 {sWB}, s14, {OMW}')
    a(f's_and_b32 s39, {sC}, 1'); a('s_lshl_b32 s39, s39, 5')
    a(f'v_xor_b32 v{E}, s39, v{AK}'); a(f'v_xor_b32 v{E+1}, 16, v{E}')
    a(f'v_lshlrev_b32 v{E+2}, 2, v{vL}')
    a(f's_lshl_b32 s39, s2, 3'); a(f's_add_u32 s39, s39, {sC}')
    def consts():
        a(f'v_mov_b32 v{vCS}, {f32(-0.5 * 128.0 ** -0.5 * 1.4426950408889634)}')
        a(f'v_xor_b32 v{vY}, v{vG}, v{vJ}'); a(f'v_lshlrev_b32 v{vY}, 4, v{vY}')
        c('K / omega operand reads: tile row j sits in LDS row (j&3)*4 + (j>>2), its chunk c in slot c ^ j')
        a(f'v_and_b32 v{T}, 3, v{vJ}'); a(f'v_lshrrev_b32 v{T+1}, 2, v{vJ}')
        a(f'v_lshl_add_u32 v{T+2}, v{T}, 2, v{T+1}')
        a(f'v_lshl_add_u32 v{vWA}, v{T+2}, 2, {sWB}')
        a(f'v_lshl_add_u32 v{AK}, v{T+2}, 8, v{vY}')
        for t in range(1, 4): a(f'v_xor_b32 v{AK+t}, {64*t}, v{AK}')
        for t in range(4): a(f'v_add_u32 v{T+t}, {OMW}, v{AK+t}')
        a(f'v_lshlrev_b32 v{T+4}, 4, v{vG}')
        a(f'v_add_u32 v{T+4}, {QS}, v{T+4}')
        a(f'v_lshl_add_u32 v{T+5}, v{vL}, 4, {sWB}')
        a(f's_lshl_b32 {sSLOT}, {sC}, 12')
        a(f's_mov_b32 {sMODE}, 0')
        a(f's_mov_b32 {sCNT}, 32')
        a(f'v_lshlrev_b32 v{G+2}, 7, v{vL}'); a(f'v_mov_b32 v{G+3}, 1')
    if omlate: consts()
    a('s_waitcnt lgkmcnt(0)')
    a('s_mov_b32 s16, s10'); a('s_mov_b32 s17, s11')
    a('s_add_u32 s20, s4, s15'); a('s_addc_u32 s21, s5, 0')
    a('s_add_u32 s24, s12, s15'); a('s_addc_u32 s25, s13, 0')
    a(f'buffer_load_dwordx4 {q(KR)}, v{E}, {sX}, s14 offen')
    a(f'buffer_load_dwordx4 {q(KR+4)}, v{E+1}, {sX}, s14 offen offset:1024')
    a(f's_cmp_lg_u32 {sC}, 0'); a('s_cbranch_scc1 L_om2')
    a(f's_mov_b32 m0, {QS}')
    a(f'buffer_load_dword v{E+2}, {sQ}, 0 offen lds      ; q row')
    a('L_om2:')
    c('one wave of one workgroup zeroes the rank counters in d_ws, then raises the flags in d_debug')
    a(f's_cmp_lg_u32 s39, {8*zwg + 7}'); a('s_cbranch_scc1 L_nz')
    a(f'v_mul_u32_u24 v{G}, {spread}, v{vL}'); a(f'v_add_u32 v{G}, {CB}, v{G}'); a(f'v_mov_b32 v{G+1}, 0')
    a(f'global_store_dword v{G}, v{G+1}, s[70:71] sc0 sc1')
    a('L_nz:')
    if not omlate: consts()
    a('s_waitcnt vmcnt(0)')
    a(f's_cmp_lg_u32 s39, {8*zwg + 7}'); a('s_cbranch_scc1 L_nf')
    a('s_mov_b64 exec, 3')
    a(f'global_store_dword v{G+2}, v{G+3}, s[68:69] sc0 sc1')
    a('s_mov_b64 exec, -1')
    a('L_nf:')
    a(f'v_lshlrev_b32 v{G+1}, 4, v{vL}'); a(f'v_add_u32 v{G+1}, {PHA}, v{G+1}')
    c('omega\' = bf16(omega * d^-1/4 * log2(e))')
    a(f's_mov_b32 s15, {f32(128.0 ** -0.25 * 1.4426950408889634)}')
    for i in range(8):
        a(f'v_lshlrev_b32 v{P+2*i}, 16, v{KR+i}'); a(f'v_and_b32 v{P+2*i+1}, 0xffff0000, v{KR+i}')
    for i in range(16): a(f'v_mul_f32 v{P+i}, s15, v{P+i}')
    for i in range(8): a(f'v_cvt_pk_bf16_f32 v{KR+i}, v{P+2*i}, v{P+2*i+1}')
    a(f'ds_write_b128 v{T+5}, {q(KR)}'); a(f'ds_write_b128 v{T+5}, {q(KR+4)} offset:1024')
    if touch:
        a('s_lshl_b32 s14, s2, 20'); a('s_add_u32 s8, s8, s14'); a('s_addc_u32 s9, s9, 0')
        a(f'v_mov_b32 v{T+6}, 0')
        a(f'global_load_dword v{vDUM}, v{T+6}, s[8:9] nt')
    a('s_waitcnt lgkmcnt(0)')
    a('s_barrier')
    for t in range(4):
        if t == 3: a('s_waitcnt lgkmcnt(4)')
        for mt in range(4): a(f'ds_read_b128 {q(OM+16*t+4*mt)}, v{T+t} offset:{4096*mt}')
    a(f's_cmp_lg_u32 {sC}, 0'); a('s_cbranch_scc1 L_k0')
    for t in range(4): a(f'ds_read_b128 {q(KR+4*t)}, v{T+4} offset:{64*t}')
    a('s_branch L_front')
    c('consumer 0 sent q through the K code: phi_q = exp(..)/8 + 1e-6;  PHI = phi_q/8 (absorbs phi_k\'s m^-1/2), row 0 only')
    a('L_phiq:')
    a(f'v_mov_b32 v{T+1}, {f32(1e-6)}')
    a(f'v_mov_b32 v{T+2}, {f32(0.125)}')
    for i in range(16): a(f'v_fma_f32 v{P+i}, v{P+i}, v{T+2}, v{T+1}')
    for i in range(16): a(f'v_mul_f32 v{P+i}, v{P+i}, v{T+2}')
    for i in range(8): a(f'v_cvt_pk_bf16_f32 v{PHI+i}, v{P+2*i}, v{P+2*i+1}')
    a(f'v_mov_b32 v{T+4}, 0x3f803f80')
    for i in range(5, 8): a(f'v_mov_b32 v{T+i}, v{T+4}')
    a(f'v_cmp_eq_u32 vcc, 0, v{vJ}')
    a(f'v_mfma_f32_16x16x32_bf16 {q(W)}, {q(T+4)}, {q(PHI)}, 0')
    a(f'v_mfma_f32_16x16x32_bf16 {q(W)}, {q(T+4)}, {q(PHI+4)}, {q(W)}')
    for i in range(8): a(f'v_cndmask_b32 v{E+i}, 0, v{PHI+i}, vcc')
    a(f'v_mul_f32 v{G+2}, {f32(8e-6)}, v{W}')
    a(f'v_mov_b32 v{G+3}, {C0A}')
    a(f'ds_write_b128 v{G+1}, {q(E)}'); a(f'ds_write_b128 v{G+1}, {q(E+4)} offset:1024')
    a(f'ds_write_b32 v{G+3}, v{G+2}')
    def addrs():
        for t in range(4): a(f'v_add_u32 v{T+t}, {sSLOT}, v{AK+t}')
        a(f's_add_u32 {sSLOT}, {sSLOT}, 0x8000'); a(f's_and_b32 {sSLOT}, {sSLOT}, 0x1ffff')
    a('L_k0:')
    a(f's_mov_b32 {sMODE}, 1')
    addrs()
    a('s_branch L_k1')
    a('L_phi:')
    a(f'ds_read_b128 {q(PHI)}, v{G+1}'); a(f'ds_read_b128 {q(PHI+4)}, v{G+1} offset:1024')
    a('s_waitcnt lgkmcnt(0)')
    a('s_branch L_kw')
    c('---------------- K pass')
    def w_mfma():
        a(f'v_mfma_f32_16x16x32_bf16 {q(W)}, {q(PHI)}, {q(E)}, 0')
        a(f'v_mfma_f32_16x16x32_bf16 {q(W)}, {q(PHI+4)}, {q(E+4)}, {q(W)}')
    def wr_w():
        a('s_mov_b64 exec, 0xffff')
        a(f'ds_write_b32 v{vWA}, v{W}')
        a('s_mov_b64 exec, -1')
    a('.p2align 3')
    a('L_k:')
    a('s_barrier')
    a(f's_cmp_eq_u32 {sCNT}, 31'); a('s_cbranch_scc1 L_phi')
    a('L_kw:')
    w_mfma()
    addrs()
    wr_w()
    a(f'v_add_u32 v{vWA}, 64, v{vWA}')
    a('L_k1:')
    for t in range(4): a(f'ds_read_b128 {q(KR+4*t)}, v{T+t}')
    a('L_front:')
    for t in range(4):
        a(f's_waitcnt lgkmcnt({3-t})')
        for d in range(4): a(f'v_dot2_f32_bf16 v{G}, v{KR+4*t+d}, v{KR+4*t+d}, ' + ('0' if t == 0 and d == 0 else f'v{G}'))
    a(f'v_mfma_f32_16x16x4_f32 {q(S)}, v{vCS}, v{G}, 0')
    for h in range(4*heavy): a(f'v_mfma_f32_16x16x32_bf16 {q(E)}, {q(OM+4*h)}, {q(KR+4*(h&3))}, 0')
    for mt in range(4):
        for t in range(4):
            a(f'v_mfma_f32_16x16x32_bf16 {q(P+4*mt)}, {q(OM+16*t+4*mt)}, {q(KR+4*t)}, ' + (q(S) if t == 0 else q(P+4*mt)))
    for i in range(16): a(f'v_exp_f32 v{P+i}, v{P+i}')
    a(f's_cmp_eq_u32 {sMODE}, 0'); a('s_cbranch_scc1 L_phiq')
    for i in range(8): a(f'v_cvt_pk_bf16_f32 v{E+i}, v{P+2*i}, v{P+2*i+1}')
    a(f's_sub_u32 {sCNT}, {sCNT}, 1')
    a(f's_cmp_lg_u32 {sCNT}, 0'); a('s_cbranch_scc1 L_k')
    a('s_barrier')
    w_mfma()
    a(f'v_mov_b32 v{G+3}, {C0A}')
    a(f'ds_read_b32 v{G+2}, v{G+3}')
    wr_w()
    if stamps == 3: a('s_memrealtime s[60:61]')
    c('---------------- V pass: A[i][8g+e] = w(row 4t+g) if e == i&7 (high part for i < 8, low part for i >= 8), B = V rows')
    for r in range(4): a(f'v_mov_b32 v{ACC+r}, 0')
    a(f'v_mov_b32 v{vDEN}, 0'); a(f'v_mov_b32 v{vONE}, 1.0')
    a(f'v_and_b32 v{T}, 1, v{vJ}'); a(f'v_lshlrev_b32 v{T}, 4, v{T}')
    a(f'v_mov_b32 v{T+1}, 0xffff'); a(f'v_lshlrev_b32 v{T}, v{T}, v{T+1}')
    a(f'v_bfe_u32 v{T+1}, v{vJ}, 1, 2')
    for n in range(4): a(f'v_cmp_eq_u32 {DM[n]}, {n}, v{T+1}')
    a(f'v_lshrrev_b32 v{T+2}, 3, v{vJ}')
    a(f'v_cvt_f32_u32 v{vM01}, v{T+2}')
    for n in range(4): a(f'v_cndmask_b32 v{MASK+n}, 0, v{T}, {DM[n]}')
    a(f'v_lshl_add_u32 v{AK}, v{vG}, 10, v{vY}')
    for t in range(1, 4): a(f'v_xor_b32 v{AK+t}, {64*t + 256*t}, v{AK}')
    a(f'v_lshl_add_u32 v{vWA}, v{vG}, 4, {sWB}')
    a(f's_mov_b32 {sCNT}, 32')
    a(f'v_and_b32 v{FR}, 1, v{vG}'); a(f'v_lshlrev_b32 v{FR}, 3, v{FR}')
    a(f'v_lshl_add_u32 v{FR}, v{vJ}, 4, v{FR}')
    a(f'v_lshrrev_b32 v{FR+2}, 1, v{vG}')
    a(f'v_lshl_add_u32 v{FR+2}, v{FR+2}, 2, v{FR}      ; output dword of the lane: d = 8c + 4(g&1) + 2(g>>1)')
    a(f'v_mov_b32 v{FR+1}, {DENA}')
    a(f's_lshl_b32 s15, {sC}, 10')
    a(f'v_lshl_add_u32 v{FR+3}, v{vL}, 4, s15')
    a(f's_lshl_b32 s15, {sC}, 2'); a(f's_add_u32 s15, s15, {DENA}')
    a(f'v_mov_b32 v{G}, s15')
    a('s_waitcnt lgkmcnt(0)')
    a(f'v_readfirstlane_b32 {sC0}, v{G+2}')
    a('.p2align 3')
    a('L_v:')
    a(f'ds_read_b128 {q(W4)}, v{vWA}')
    a(f'v_add_u32 v{vWA}, 64, v{vWA}')
    for t in range(4): a(f'v_add_u32 v{T+4+t}, {sSLOT}, v{AK+t}')
    a(f's_add_u32 {sSLOT}, {sSLOT}, 0x8000'); a(f's_and_b32 {sSLOT}, {sSLOT}, 0x1ffff')
    a('s_waitcnt lgkmcnt(0)')
    for r in range(4): a(f'v_add_f32 v{W4+r}, {sC0}, v{W4+r}')
    for r in range(4): a(f'v_cvt_pk_bf16_f32 v{T+r}, 0, v{W4+r}')
    for r in range(4): a(f'v_fma_f32 v{T+r}, -v{T+r}, v{vM01}, v{W4+r}')
    a(f'v_add_f32 v{W4}, v{W4}, v{W4+1}'); a(f'v_add_f32 v{W4+2}, v{W4+2}, v{W4+3}')
    a(f'v_add_f32 v{vDEN}, v{vDEN}, v{W4}'); a(f'v_add_f32 v{vDEN}, v{vDEN}, v{W4+2}')
    for r in range(4): a(f'v_cvt_pk_bf16_f32 v{T+r}, v{T+r}, v{T+r}')
    a(f'v_mfma_f32_16x16x4_f32 {q(S)}, v{vONE}, v{vDEN}, 0')
    for r in range(4):
        for n in range(4): a(f'v_and_b32 v{P+4*r+n}, v{T+r}, v{MASK+n}')
    a(f'ds_write_b32 v{G}, v{S}')
    a(f's_cmp_eq_u32 {sCNT}, 32'); a('s_cbranch_scc1 L_v1')
    a('s_waitcnt lgkmcnt(0)')
    a('s_barrier')
    a('L_v1:')
    for t in range(4): a(f'ds_read_b128 {q(KR+4*t)}, v{T+4+t}')
    a(f's_sub_u32 {sCNT}, {sCNT}, 1')
    for t in range(4):
        a(f's_waitcnt lgkmcnt({3-t})')
        a(f'v_mfma_f32_16x16x32_bf16 {q(ACC)}, {q(P+4*t)}, {q(KR+4*t)}, {q(ACC)}')
    a(f's_cmp_lg_u32 {sCNT}, 0'); a('s_cbranch_scc1 L_v')
    c('---------------- cross-wave reduction, division, store')
    D0 = E; R0 = FR + 4
    def pkadd(d, x, y): a(f'v_pk_add_f32 v[{d}:{d+1}], v[{x}:{x+1}], v[{y}:{y+1}]')
    a(f's_cmp_eq_u32 {sC}, 0'); a('s_cbranch_scc1 L_fin')
    a(f'ds_write_b128 v{FR+3}, {q(ACC)}')
    a('s_waitcnt lgkmcnt(0)')
    a('s_barrier')
    a('s_endpgm')
    a('L_fin:')
    for i in range(2): a(f'ds_read_b128 {q(D0+4*i)}, v{FR+1} offset:{16*i}')
    a('s_barrier')
    for w in range(1, 8): a(f'ds_read_b128 {q(R0+4*w)}, v{FR+3} offset:{1024*w}')
    a('s_waitcnt lgkmcnt(7)')
    pkadd(D0, D0, D0+2); pkadd(D0+4, D0+4, D0+6); pkadd(D0, D0, D0+4)
    a(f'v_add_f32 v{D0}, v{D0}, v{D0+1}')
    a(f'v_add_f32 v{D0}, {f32(1e-6)}, v{D0}')
    a(f'v_rcp_f32 v{D0+1}, v{D0}')
    for w in range(1, 8):
        a(f's_waitcnt lgkmcnt({7-w})')
        src = ACC if w == 1 else R0
        pkadd(R0, src, R0+4*w); pkadd(R0+2, src+2, R0+4*w+2)
    a(f'v_permlane32_swap_b32 v{R0}, v{R0+2}')
    a(f'v_permlane32_swap_b32 v{R0+1}, v{R0+3}')
    pkadd(R0, R0, R0+2)
    a(f'v_mul_f32 v{R0}, v{R0}, v{D0+1}'); a(f'v_mul_f32 v{R0+1}, v{R0+1}, v{D0+1}')
    a(f'v_cvt_pk_bf16_f32 v{R0}, v{R0}, v{R0+1}')
    a(f'buffer_store_dword v{R0}, v{FR+2}, {sOUT}, 0 offen')
    if stamps:
        if stamps == 3: a('s_sub_u32 s62, s60, s52')
        a('s_memrealtime s[66:67]'); a('s_memtime s[48:49]')
        a('s_getreg_b32 s60, hwreg(HW_REG_XCC_ID)'); a('s_getreg_b32 s61, hwreg(HW_REG_HW_ID)')
        a('s_waitcnt lgkmcnt(0)')
        a('s_sub_u32 s48, s48, s50')
        if stamps == 3: a('s_mov_b32 s61, s62')
        for i, s in enumerate(['s52','s53','s66','s67','s60','s61','s48','0']): a(f'v_mov_b32 v{P+i}, {s}')
        a('s_lshl_b32 s15, s2, 5'); a(f'v_mov_b32 v{T}, s15')
        a('s_mov_b64 exec, 1')
        a(f'global_store_dwordx4 v{T}, {q(P)}, s[70:71]')
        a(f'global_store_dwordx4 v{T}, {q(P+4)}, s[70:71] offset:16')
    a('L_done:')
    a('s_endpgm')
    body = a.finalize()
    tl = f""".section .rodata,"a"
.p2align 6
.amdhsa_kernel {KN}
  .amdhsa_next_free_vgpr {NV}
  .amdhsa_next_free_sgpr 72
  .amdhsa_accum_offset {(NV+3)//4*4}
  .amdhsa_group_segment_fixed_size 0
  .amdhsa_kernarg_size 56
  .amdhsa_user_sgpr_count 2
  .amdhsa_user_sgpr_kernarg_segment_ptr 1
  .amdhsa_system_sgpr_workgroup_id_x 1
  .amdhsa_float_denorm_mode_32 3
.end_amdhsa_kernel
"""
    sys.stderr.write(f'NV={NV} nops={a.nops}\n')
    return body + tl

if __name__ == '__main__':
    out = []
    for spec in sys.argv[1:]:
        kw = {}
        name = None
        for kv in spec.split(','):
            if not kv: continue
            k, v = kv.split('=')
            if k == 'out': name = v; continue
            if k not in ('so',):
                try: v = ast.literal_eval(v)
                except Exception: v = v.replace('+', ' ')
            kw[k] = v
        name = name or ('scratch/k/e_' + spec.replace('=', '').replace(',', '_').replace('+', '') + '.s')
        open(name, 'w').write(gen(**kw))
        out.append(name)
    print(' '.join(out))
```

```python
import sys, struct, ast
sys.path.insert(0, 'gen')
from asmlib import Asm
KN = 'standalone__linear_kernel_rfa__decode_kernel'
def f32(x): return '0x%08x' % struct.unpack('<I', struct.pack('<f', x))[0]

HEADER = """; Kernarg layout for this problem (56 bytes, ptrs only, base s[0:1]):
;   offset  32: d_out     shape=(8, 32, 1, 128) dtype=bfloat16 (2 bytes/elem)
"""
DOC = """;
; out = (phi_q phi_k^T) V / (phi_q phi_k^T 1 + 1e-6): with one query the [m,d] state is never formed, every key
;   wave 0      loader: streams all of K, then all of V (the two tensors are never read at the same time), through
"""

def gen(lo=18, hi=27, base=21, sh=4, gb=3, ofs=10, sen=6, last=61, n0=5, ev=3, so='ah.i.aj.a.c', spread=768,
        stamps=0, touch=1, prio=3, zwg=0, extra=1, omlate=0, heavy=0, asym=0, dv=-6, tail=1, pads=0, om=0, vpads=1, gb1=0, gt=20, ptn=1):
    bitof = lambda ch: int(ch) if ch.isdigit() else ord(ch) - ord('a') + 10
    ib = [11, 13]; tb0 = 14
    IOFF = [0, 1 << ib[0], 1 << ib[1], (1 << ib[0]) + (1 << ib[1])]
    COLS = [[bitof(ch) for ch in col] for col in (so.split('.') if '.' in so else list(so))]
    ROWS = {}
    for k, col in enumerate(COLS):
        for b in col: ROWS.setdefault(b, []).append(k)
    assert sorted(list(ROWS) + ib + [tb0, tb0+1, tb0+2]) == list(range(10, 20))
    soff = lambda st: sum(1 << b for b, ks in ROWS.items() if sum(st >> k & 1 for k in ks) & 1)
    assert len({soff(st) for st in range(32)}) == 32
    WINS = list(range(lo, hi + 1))
    CB = 16384
    PB = CB + 64*spread
    PTAG = 0x5c3a0000
    OMW = 131072; QS = OMW + 16384; DENA = QS + 256; C0A = DENA + 64; PHA = QS + 512; LDS = PHA + 2048
    a = Asm()
    def c(t): a.raw('; ' + t)
    a.raw(HEADER.rstrip())
    a.raw(f'; @launch grid=(256,1,1) block=(576,1,1) lds={LDS}')
    a.raw(DOC.rstrip())
    a.raw('.amdgcn_target "amdgcn-amd-amdhsa--gfx950"')
    a.raw('.text'); a.raw(f'.globl {KN}'); a.raw('.p2align 8'); a.raw(f'.type {KN},@function')
    a(f'{KN}:')
    nxt = [1]
    def V(n=1, al=1):
        b = (nxt[0] + al - 1)//al*al; nxt[0] = b + n; return b
    vL, vJ, vG, vY, vWA, vCS, vDUM = [V() for _ in range(7)]
    AK = V(4, 4); T = V(8, 4); G = V(4, 4); S = V(4, 4); PHI = V(8, 4); E = V(8, 4)
    KR = V(16, 4); P = V(16, 4); OM = V(64, 4)
    NV = nxt[0]
    W = S
    ACC = OM; MASK = OM + 4; vM01 = OM + 8; vDEN = OM + 9; vONE = OM + 10; W4 = OM + 12; FR = OM + 16
    def q(b): return f'v[{b}:{b+3}]'
    sX = 's[16:19]'
    sQ, sOUT = 's[20:23]', 's[24:27]'
    sW, sC, sSLOT, sCNT, sC0, sMODE, sOFF, sWB = 's3', 's28', 's29', 's30', 's32', 's36', 's37', 's38'
    DM = ['s[40:41]', 's[42:43]', 's[44:45]', 's[46:47]']
    a('s_load_dwordx8 s[4:11], s[0:1], 0')
    a(f'v_readfirstlane_b32 {sW}, v0')
    c('LDS image of a tile: load n, lane (g = lane>>4, p = lane&15) brings chunk p ^ (4g+n) of tile row j = 4g+n')
    a(f'v_and_b32 v{T}, 48, v0')
    a(f'v_lshlrev_b32 v{AK}, 4, v0')
    a(f'v_lshlrev_b32 v{T}, 2, v{T}')
    a('s_lshr_b32 s15, s2, 8'); a('s_cbranch_scc1 L_done')
    a(f'v_xor_b32 v{AK}, v{AK}, v{T}')
    a('s_lshl_b32 s19, 1, 17')
    a(f's_lshr_b32 {sW}, {sW}, 6'); a('s_cbranch_scc1 L_cons')
    c('================ loader wave')
    for n in range(1, 4): a(f'v_xor_b32 v{AK+n}, {16*n + IOFF[n] - 1024*n}, v{AK}')
    a('s_lshl_b32 s14, s2, 20')
    a('s_lshl_b32 s18, 1, 20')
    a('s_mov_b32 m0, 0'); a(f's_mov_b32 {sOFF}, 0')
    a('s_waitcnt lgkmcnt(0)')
    a('s_add_u32 s16, s6, s14'); a('s_addc_u32 s17, s7, 0')
    vPA, vPB, vBA, vP, vR, vS = T, T+1, T+2, T+3, T+4, T+5
    sVAR, sTURN, sR, sEN, sB, sN, sSL, sOFS, sMK, sS = 's31', 's32', 's33', 's34', 's35', 's36', 's24', 's25', 's26', 's27'
    def dma(n): a(f'buffer_load_dwordx4 v{AK+n}, {sX}, {sOFF} offen offset:{1024*n} nt lds')
    def load(n, w):
        k = w - 1
        im = k + (k - n)//4 + 1 + extra
        assert im <= 47
        a(f's_waitcnt vmcnt({im})'); dma(n)
    a('L_s:')
    for n in range(4): dma(n)
    a('s_add_u32 m0, m0, 4096')
    a(f's_add_u32 {sOFF}, {sOFF}, {1 << tb0}')
    a(f's_cmp_lg_u32 {sOFF}, {hex(n0 << tb0)}'); a('s_cbranch_scc1 L_s')
    assert n0 in (4, 5, 6)
    c('balancing set-up while the first loads are in flight: table of this XCD, slot of this CU')
    a('s_load_dwordx4 s[20:23], s[0:1], 40')
    if prio: a(f's_setprio {prio}')
    a('s_getreg_b32 s15, hwreg(HW_REG_XCC_ID, 0, 3)')
    a(f's_getreg_b32 {sSL}, hwreg(HW_REG_HW_ID, 8, 4)')
    a('s_getreg_b32 s13, hwreg(HW_REG_HW_ID, 13, 2)')
    a('s_mul_i32 s15, s15, 1280'); a(f's_add_u32 s15, s15, {PB}')
    a(f's_lshl4_add_u32 {sSL}, s13, {sSL}')
    a(f'v_lshl_add_u32 v{vPB}, v0, 2, s15')
    a(f's_lshl2_add_u32 s13, {sSL}, s15'); a(f'v_mov_b32 v{vPA}, s13')
    a('s_add_u32 s15, s15, 252'); a(f'v_mov_b32 v{vBA}, s15')
    a(f'v_mov_b32 v{vP}, {hex(PTAG + n0)}'); a(f'v_mov_b32 v{vR}, 0')
    if not ptn: a(f's_lshr_b32 {sTURN}, s2, 3'); a(f's_lshl_b32 {sTURN}, {sTURN}, 1')
    a(f's_mov_b32 {sMK}, 0'); a(f's_mov_b32 {sOFS}, 0'); a(f's_mov_b32 {sCNT}, 0'); a(f's_mov_b32 {sEN}, 0')
    a('s_waitcnt lgkmcnt(0)')
    a(f'global_store_dword v{vBA}, v{vR}, s[22:23]')
    bi = WINS.index(base)
    order_ = [bi] + [i for d in range(1, len(WINS)) for i in (bi + d, bi - d) if 0 <= i < len(WINS)]
    VP = []
    def vpad(level=1):
        if vpads >= level and not (vpads == 1 and len(VP) == 8):
            VP.append(len(a.ins) + 1); a(f'L_vp{len(VP)-1}:'); a('s_cbranch_execz L_vb')
    def variant(i):
        w = WINS[i]
        c(f'half a stage (4 tiles) with {w} loads in flight')
        a(f'L_w{i}:')
        for n in range(4): load(n, w)
        a(f'v_add_u32 v{vP}, 1, v{vP}')
        a('s_add_u32 m0, m0, 4096')
        a(f's_add_u32 {sOFF}, {sOFF}, {1 << tb0}')
        a(f'global_store_dword v{vPA}, v{vP}, s[22:23]')
        a(f's_andn2_b32 s15, {hex(3 << tb0)}, {sOFF}')
        a(f's_cbranch_scc1 L_w{i}')
        load(0, w)
        a(f'v_mov_b32 v{vS}, v{vR}')
        a(f'v_readlane_b32 {sN}, v{vS}, {sSL}')
        a(f'v_readlane_b32 {sB}, v{vS}, 63')
        a(f'v_subrev_u32 v{vS}, {sN}, v{vS}')
        a(f'v_writelane_b32 v{vS}, 0, 63')
        if i != bi: vpad(2)
        load(1, w)
        for x in (1, 2): a(f'v_add_u32_dpp v{vS}, v{vS}, v{vS} row_shr:{x} row_mask:0xf bank_mask:0xf bound_ctrl:1')
        load(2, w)
        for x in (4, 8): a(f'v_add_u32_dpp v{vS}, v{vS}, v{vS} row_shr:{x} row_mask:0xf bank_mask:0xf bound_ctrl:1')
        load(3, w)
        a(f'v_add_u32_dpp v{vS}, v{vS}, v{vS} row_bcast:15 row_mask:0xa bank_mask:0xf')
        a(f'v_add_u32 v{vP}, 1, v{vP}')
        a('s_add_u32 m0, m0, 4096')
        a(f'v_add_u32_dpp v{vS}, v{vS}, v{vS} row_bcast:31 row_mask:0xc bank_mask:0xf')
    variant(order_[0])
    a('L_se:')
    a(f'global_store_dword v{vPA}, v{vP}, s[22:23]')
    a(f'v_readlane_b32 {sS}, v{vS}, 63')
    a(f'global_load_dword v{vR}, v{vPB}, s[22:23] nt')
    a(f's_add_u32 {sOFF}, {sOFF}, {1 << tb0}')
    a(f's_add_u32 {sS}, {sS}, {sB}')
    a(f's_add_u32 {sS}, {sS}, {sOFS}')
    a(f's_and_b32 {sS}, {sS}, {sMK}')
    a(f's_ashr_i32 {sVAR}, {sS}, {sh}')
    a(f's_bitcmp1_b32 {sOFF}, {tb0+2}'); a('s_cbranch_scc0 L_st')
    if tail == 1: a(f's_cmp_eq_u32 {sCNT}, 63'); a('s_cbranch_scc1 L_le')
    a('L_top:')
    up, dn = len(WINS) - 1 - bi, bi
    for i in order_:
        d = i - bi
        if i == order_[-1]: a(f's_branch L_w{i}'); break
        if d == up and d > 0: a(f's_cmp_ge_i32 {sVAR}, {d}')
        elif d == -dn and d < 0: a(f's_cmp_le_i32 {sVAR}, {d}')
        else: a(f's_cmp_eq_i32 {sVAR}, {d}')
        a(f's_cbranch_scc1 L_w{i}')
    c('end of a stage: byte offset of the next one (row order chosen for DRAM channel/bank spread), hand-over barrier')
    a('L_st:')
    a('s_and_b32 m0, m0, 0x1ffff')
    a(f's_add_u32 {sCNT}, {sCNT}, 1')
    groups = {}
    for b, ks in ROWS.items():
        if len(ks) == 1: groups.setdefault(b - ks[0], []).append(b)
    left = sorted(groups); first = True
    while left:
        pick = [left[0]]
        for x in left[1:]:
            if x - pick[-1] >= 7: pick.append(x)
        left = [x for x in left if x not in pick]
        d = sOFF if first else 's15'
        if len(pick) > 1: a(f's_mul_i32 {d}, {sCNT}, {hex(sum(1 << x for x in pick))}')
        else: a(f's_lshl_b32 {d}, {sCNT}, {pick[0]}')
        a(f's_and_b32 {d}, {d}, {hex(sum(1 << b for x in pick for b in groups[x]))}')
        if not first: a(f's_or_b32 {sOFF}, {sOFF}, s15')
        first = False
    for b, ks in ROWS.items():
        if len(ks) > 1:
            a(f's_and_b32 s15, {sCNT}, {sum(1 << k for k in ks)}'); a('s_bcnt1_i32_b32 s15, s15')
            a('s_bitcmp1_b32 s15, 0'); a(f's_cselect_b32 s15, {1 << b}, 0'); a(f's_or_b32 {sOFF}, {sOFF}, s15')
    a(f's_cmp_le_u32 {sCNT}, 4'); a('s_cbranch_scc1 L_early')
    a(f's_sub_u32 s15, {sCNT}, {sTURN}'); a('s_add_u32 s15, s15, 1')
    a('s_cmp_le_u32 s15, 2'); a('s_cbranch_scc1 L_rep')
    a('L_c2:')
    a('s_barrier')
    if tail > 1: a(f's_cmp_eq_u32 {sCNT}, 63'); a('s_cbranch_scc1 L_le')
    a(f's_and_b32 s15, {sCNT}, 31'); a('s_cbranch_scc1 L_top')
    a('s_add_u32 s16, s8, s14'); a('s_addc_u32 s17, s9, 0')
    if dv: a(f's_add_u32 {sOFS}, {sOFS}, {dv}')
    if tail:
        a('s_branch L_top')
        c('the last tiles are fetched by their consumers straight into registers')
        a('L_le:')
        if tail == 1:
            a('s_barrier')
            a('s_waitcnt vmcnt(16)'); a('s_barrier')
        else:
            a('s_waitcnt vmcnt(32)'); a('s_barrier')
    else:
        a(f's_cmp_eq_u32 {sCNT}, 64'); a('s_cbranch_scc0 L_top')
        a('s_waitcnt vmcnt(32)'); a('s_barrier')
    a('s_waitcnt vmcnt(0)'); a('s_barrier')
    a('s_endpgm')
    a('L_early:')
    a(f's_cmp_eq_u32 {sCNT}, {ev}'); a('s_cbranch_scc1 L_e3')
    a(f's_cmp_gt_u32 {sCNT}, {ev}'); a(f's_cselect_b32 {sMK}, -1, 0')
    a('L_e4:')
    a(f's_bitcmp1_b32 {sCNT}, 0'); a('s_cbranch_scc1 L_top')
    a('s_waitcnt vmcnt(32)')
    a('s_branch L_c2')
    c('table slots that do not hold a running neighbour\'s count are redirected to the own slot')
    a('L_e3:')
    a(f'v_sub_u32 v{vS}, v{vR}, v{vP}')
    a(f'v_add_u32 v{vS}, 32, v{vS}')
    a(f'v_cmp_gt_u32 vcc, 64, v{vS}')
    a(f's_bcnt1_i32_b64 {sOFS}, vcc')
    if ptn:
        a(f's_bfm_b64 s[12:13], {sSL}, 0')
        a('s_and_b64 s[12:13], s[12:13], vcc')
        a(f's_bcnt1_i32_b64 {sTURN}, s[12:13]'); a(f's_lshl_b32 {sTURN}, {sTURN}, 1')
    a('s_bitset1_b32 vcc_hi, 31')
    a(f's_lshr_b32 {sOFS}, {sOFS}, 1'); a(f's_add_u32 {sOFS}, {sOFS}, {(1 << (sh-1)) + ofs}')
    a(f'v_cndmask_b32 v{vPB}, v{vPA}, v{vPB}, vcc')
    a('s_branch L_e4')
    vpad(3)
    c('this workgroup\'s turn: read the flag, then draw the arrival rank, then update the XCD bias')
    a('L_rep:')
    a('s_cmp_eq_u32 s15, 1'); a('s_cbranch_scc1 L_r1')
    a('s_cmp_eq_u32 s15, 2'); a('s_cbranch_scc1 L_r2')
    a(f's_cmp_ge_u32 {sCNT}, {sen + 6}'); a('s_cselect_b32 s15, 128, 0')
    if sen > 6: a(f's_cmp_lt_u32 {sCNT}, {sen - 1}'); a('s_cbranch_scc1 L_c2')
    a(f's_cmp_ge_u32 {sCNT}, {last}'); a('s_cbranch_scc1 L_c2')
    a(f's_load_dword {sEN}, s[20:21], s15')
    a('s_branch L_c2')
    vpad(3)
    a('L_r1:')
    a('s_waitcnt lgkmcnt(0)')
    a(f's_cmp_lg_u32 {sEN}, 1'); a('s_cbranch_scc1 L_c2')
    a(f's_mul_i32 s15, {sCNT}, {spread}'); a(f's_add_u32 s15, s15, {CB}')
    if gb1:
        a(f's_cmp_lt_u32 {sCNT}, {gt}'); a(f's_cselect_b32 {sR}, {2*gb1}, {2*gb}'); a(f's_cselect_b32 s12, {7*gb1}, {7*gb}')
    else: a(f's_mov_b32 {sR}, {2*gb}')
    a(f's_atomic_add {sR}, s[22:23], s15 glc')
    a('s_branch L_c2')
    a('L_r2:')
    a(f's_cmp_lg_u32 {sEN}, 1'); a('s_cbranch_scc1 L_c2')
    a(f's_ashr_i32 s15, {sB}, 1'); a('s_sub_u32 s15, s15, ' + ('s12' if gb1 else str(7*gb)))
    if asym:
        a(f's_ashr_i32 s13, {sB}, 2')
        if asym == 1: a('s_min_i32 s13, s13, 0')
        a('s_add_u32 s15, s15, s13')
    a('s_waitcnt lgkmcnt(0)')
    a(f's_add_u32 s15, s15, {sR}')
    a(f'v_mov_b32 v{vS}, s15')
    a(f'global_store_dword v{vBA}, v{vS}, s[22:23]')
    a('s_branch L_c2')
    for k, i in enumerate(order_[1:]):
        vpad()
        variant(i)
        a('s_branch L_se')
    from asmlib import Ins
    for k, pos in enumerate(VP):
        if k + 8 < len(VP): a.ins[pos] = Ins(f's_cbranch_execz L_vp{k+8}')
    c('================ consumer waves')
    a('L_cons:')
    if stamps: a('s_memrealtime s[52:53]'); a('s_memtime s[50:51]')
    a('s_load_dwordx2 s[12:13], s[0:1], 32')
    a('s_load_dwordx4 s[68:71], s[0:1], 40')
    a(f's_sub_u32 {sC}, {sW}, 1')
    a(f'v_and_b32 v{vL}, 63, v0')
    a(f'v_and_b32 v{vJ}, 15, v0')
    a(f'v_lshrrev_b32 v{vG}, 4, v{vL}')
    a(f'v_and_b32 v{AK}, 0x3ff, v{AK}')
    a('s_mov_b32 s18, 0x4000')
    a('s_mov_b32 s22, 0x100'); a('s_mov_b32 s23, 0x20000')
    a('s_mov_b32 s26, 0x100'); a('s_mov_b32 s27, 0x20000')
    a('s_lshl_b32 s15, s2, 8')
    a(f's_lshl_b32 s14, {sC}, 11')
    a(f's_add_u32 {sWB}, s14, {OMW}')
    a(f's_and_b32 s39, {sC}, 1'); a('s_lshl_b32 s39, s39, 5')
    a(f'v_xor_b32 v{E}, s39, v{AK}'); a(f'v_xor_b32 v{E+1}, 16, v{E}')
    a(f'v_lshlrev_b32 v{E+2}, 2, v{vL}')
    a(f's_lshl_b32 s39, s2, 3'); a(f's_add_u32 s39, s39, {sC}')
    def consts():
        a(f'v_mov_b32 v{vCS}, {f32(-0.5 * 128.0 ** -0.5 * 1.4426950408889634)}')
        a(f'v_xor_b32 v{vY}, v{vG}, v{vJ}'); a(f'v_lshlrev_b32 v{vY}, 4, v{vY}')
        c('K / omega operand reads: tile row j sits in LDS row (j&3)*4 + (j>>2), its chunk c in slot c ^ j')
        a(f'v_and_b32 v{T}, 3, v{vJ}'); a(f'v_lshrrev_b32 v{T+1}, 2, v{vJ}')
        a(f'v_lshl_add_u32 v{T+2}, v{T}, 2, v{T+1}')
        a(f'v_lshl_add_u32 v{vWA}, v{T+2}, 2, {sWB}')
        a(f'v_lshl_add_u32 v{AK}, v{T+2}, 8, v{vY}')
        for t in range(1, 4): a(f'v_xor_b32 v{AK+t}, {64*t}, v{AK}')
        for t in range(4): a(f'v_add_u32 v{T+t}, {OMW}, v{AK+t}')
        a(f'v_lshlrev_b32 v{T+4}, 4, v{vG}')
        a(f'v_add_u32 v{T+4}, {QS}, v{T+4}')
        a(f'v_lshl_add_u32 v{T+5}, v{vL}, 4, {sWB}')
        a(f's_lshl_b32 {sSLOT}, {sC}, 12')
        a(f's_mov_b32 {sMODE}, 0')
        a(f's_mov_b32 {sCNT}, 32')
        a(f'v_lshlrev_b32 v{G+2}, 7, v{vL}'); a(f'v_mov_b32 v{G+3}, 1')
    if omlate: consts()
    a('s_waitcnt lgkmcnt(0)')
    a('s_mov_b32 s16, s10'); a('s_mov_b32 s17, s11')
    a('s_add_u32 s20, s4, s15'); a('s_addc_u32 s21, s5, 0')
    a('s_add_u32 s24, s12, s15'); a('s_addc_u32 s25, s13, 0')
    if om == 2:
        a('s_lshr_b32 s13, s2, 3'); a('s_lshl_b32 s13, s13, 9')
        a(f'v_lshlrev_b32 v{E+3}, 7, v{vG}')
        a(f'buffer_load_dword v{vDUM}, v{E+3}, {sX}, s13 offen')
        a('s_waitcnt vmcnt(0)')
    if om != 1:
        a(f'buffer_load_dwordx4 {q(KR)}, v{E}, {sX}, s14 offen')
        if om == 3: a('s_waitcnt vmcnt(0)')
        a(f'buffer_load_dwordx4 {q(KR+4)}, v{E+1}, {sX}, s14 offen offset:1024')
    a(f's_cmp_lg_u32 {sC}, 0'); a('s_cbranch_scc1 L_om2')
    a(f's_mov_b32 m0, {QS}')
    a(f'buffer_load_dword v{E+2}, {sQ}, 0 offen lds      ; q row')
    a('L_om2:')
    c('one wave of one workgroup zeroes the rank counters in d_ws, then raises the flags in d_debug')
    a(f's_cmp_lg_u32 s39, {8*zwg + 7}'); a('s_cbranch_scc1 L_nz')
    a(f'v_mul_u32_u24 v{G}, {spread}, v{vL}'); a(f'v_add_u32 v{G}, {CB}, v{G}'); a(f'v_mov_b32 v{G+1}, 0')
    a(f'global_store_dword v{G}, v{G+1}, s[70:71] sc0 sc1')
    a('L_nz:')
    if not omlate: consts()
    if vpads:
        c('while omega is in flight: hop once through the loader code that has not run yet (instruction cache)')
        a('s_mov_b64 exec, 0')
        for k in range(8): a(f's_cmp_eq_u32 {sC}, {k}'); a(f's_cbranch_scc1 L_vp{k}')
        a('L_vb:')
        a('s_mov_b64 exec, -1')
    a('s_waitcnt vmcnt(0)')
    a(f's_cmp_lg_u32 s39, {8*zwg + 7}'); a('s_cbranch_scc1 L_nf')
    a('s_mov_b64 exec, 3')
    a(f'global_store_dword v{G+2}, v{G+3}, s[68:69] sc0 sc1')
    a('s_mov_b64 exec, -1')
    a('L_nf:')
    a(f'v_lshlrev_b32 v{G+1}, 4, v{vL}'); a(f'v_add_u32 v{G+1}, {PHA}, v{G+1}')
    c('omega\' = bf16(omega * d^-1/4 * log2(e))')
    a(f's_mov_b32 s15, {f32(128.0 ** -0.25 * 1.4426950408889634)}')
    for i in range(8):
        a(f'v_lshlrev_b32 v{P+2*i}, 16, v{KR+i}'); a(f'v_and_b32 v{P+2*i+1}, 0xffff0000, v{KR+i}')
    for i in range(16): a(f'v_mul_f32 v{P+i}, s15, v{P+i}')
    for i in range(8): a(f'v_cvt_pk_bf16_f32 v{KR+i}, v{P+2*i}, v{P+2*i+1}')
    a(f'ds_write_b128 v{T+5}, {q(KR)}'); a(f'ds_write_b128 v{T+5}, {q(KR+4)} offset:1024')
    if touch:
        a('s_lshl_b32 s14, s2, 20'); a('s_add_u32 s8, s8, s14'); a('s_addc_u32 s9, s9, 0')
        a(f'v_mov_b32 v{T+6}, 0')
        a(f'global_load_dword v{vDUM}, v{T+6}, s[8:9] nt')
    a('s_waitcnt lgkmcnt(0)')
    a('s_barrier')
    for t in range(4):
        if t == 3: a('s_waitcnt lgkmcnt(4)')
        for mt in range(4): a(f'ds_read_b128 {q(OM+16*t+4*mt)}, v{T+t} offset:{4096*mt}')
    a(f's_cmp_lg_u32 {sC}, 0'); a('s_cbranch_scc1 L_k0')
    for t in range(4): a(f'ds_read_b128 {q(KR+4*t)}, v{T+4} offset:{64*t}')
    a('s_branch L_front')
    c('consumer 0 sent q through the K code: phi_q = exp(..)/8 + 1e-6;  PHI = phi_q/8 (absorbs phi_k\'s m^-1/2), row 0 only')
    a('L_phiq:')
    a(f'v_mov_b32 v{T+1}, {f32(1e-6)}')
    a(f'v_mov_b32 v{T+2}, {f32(0.125)}')
    for i in range(16): a(f'v_fma_f32 v{P+i}, v{P+i}, v{T+2}, v{T+1}')
    for i in range(16): a(f'v_mul_f32 v{P+i}, v{P+i}, v{T+2}')
    for i in range(8): a(f'v_cvt_pk_bf16_f32 v{PHI+i}, v{P+2*i}, v{P+2*i+1}')
    a(f'v_mov_b32 v{T+4}, 0x3f803f80')
    for i in range(5, 8): a(f'v_mov_b32 v{T+i}, v{T+4}')
    a(f'v_cmp_eq_u32 vcc, 0, v{vJ}')
    a(f'v_mfma_f32_16x16x32_bf16 {q(W)}, {q(T+4)}, {q(PHI)}, 0')
    a(f'v_mfma_f32_16x16x32_bf16 {q(W)}, {q(T+4)}, {q(PHI+4)}, {q(W)}')
    for i in range(8): a(f'v_cndmask_b32 v{E+i}, 0, v{PHI+i}, vcc')
    a(f'v_mul_f32 v{G+2}, {f32(8e-6)}, v{W}')
    a(f'v_mov_b32 v{G+3}, {C0A}')
    a(f'ds_write_b128 v{G+1}, {q(E)}'); a(f'ds_write_b128 v{G+1}, {q(E+4)} offset:1024')
    a(f'ds_write_b32 v{G+3}, v{G+2}')
    def addrs():
        for t in range(4): a(f'v_add_u32 v{T+t}, {sSLOT}, v{AK+t}')
        a(f's_add_u32 {sSLOT}, {sSLOT}, 0x8000'); a(f's_and_b32 {sSLOT}, {sSLOT}, 0x1ffff')
    a('L_k0:')
    a(f's_mov_b32 {sMODE}, 1')
    addrs()
    a('s_branch L_k1')
    a('L_phi:')
    a(f'ds_read_b128 {q(PHI)}, v{G+1}'); a(f'ds_read_b128 {q(PHI+4)}, v{G+1} offset:1024')
    a('s_waitcnt lgkmcnt(0)')
    a('s_branch L_kw')
    c('---------------- K pass')
    def w_mfma():
        a(f'v_mfma_f32_16x16x32_bf16 {q(W)}, {q(PHI)}, {q(E)}, 0')
        a(f'v_mfma_f32_16x16x32_bf16 {q(W)}, {q(PHI+4)}, {q(E+4)}, {q(W)}')
    def wr_w():
        a('s_mov_b64 exec, 0xffff')
        a(f'ds_write_b32 v{vWA}, v{W}')
        a('s_mov_b64 exec, -1')
    a('.p2align 3')
    a('L_k:')
    a('s_barrier')
    a(f's_cmp_eq_u32 {sCNT}, 31'); a('s_cbranch_scc1 L_phi')
    a('L_kw:')
    w_mfma()
    addrs()
    wr_w()
    a(f'v_add_u32 v{vWA}, 64, v{vWA}')
    a('L_k1:')
    for t in range(4): a(f'ds_read_b128 {q(KR+4*t)}, v{T+t}')
    a('L_front:')
    for t in range(4):
        a(f's_waitcnt lgkmcnt({3-t})')
        for d in range(4): a(f'v_dot2_f32_bf16 v{G}, v{KR+4*t+d}, v{KR+4*t+d}, ' + ('0' if t == 0 and d == 0 else f'v{G}'))
    a(f'v_mfma_f32_16x16x4_f32 {q(S)}, v{vCS}, v{G}, 0')
    for h in range(4*heavy): a(f'v_mfma_f32_16x16x32_bf16 {q(E)}, {q(OM+4*h)}, {q(KR+4*(h&3))}, 0')
    for mt in range(4):
        for t in range(4):
            a(f'v_mfma_f32_16x16x32_bf16 {q(P+4*mt)}, {q(OM+16*t+4*mt)}, {q(KR+4*t)}, ' + (q(S) if t == 0 else q(P+4*mt)))
    for i in range(16): a(f'v_exp_f32 v{P+i}, v{P+i}')
    a(f's_cmp_eq_u32 {sMODE}, 0'); a('s_cbranch_scc1 L_phiq')
    for i in range(8): a(f'v_cvt_pk_bf16_f32 v{E+i}, v{P+2*i}, v{P+2*i+1}')
    a(f's_sub_u32 {sCNT}, {sCNT}, 1')
    a(f's_cmp_lg_u32 {sCNT}, 0'); a('s_cbranch_scc1 L_k')
    a('s_barrier')
    w_mfma()
    a(f'v_mov_b32 v{G+3}, {C0A}')
    a(f'ds_read_b32 v{G+2}, v{G+3}')
    wr_w()
    if stamps == 3: a('s_memrealtime s[60:61]')
    c('---------------- V pass: A[i][8g+e] = w(row 4t+g) if e == i&7 (high part for i < 8, low part for i >= 8), B = V rows')
    for r in range(4): a(f'v_mov_b32 v{ACC+r}, 0')
    a(f'v_mov_b32 v{vDEN}, 0'); a(f'v_mov_b32 v{vONE}, 1.0')
    a(f'v_and_b32 v{T}, 1, v{vJ}'); a(f'v_lshlrev_b32 v{T}, 4, v{T}')
    a(f'v_mov_b32 v{T+1}, 0xffff'); a(f'v_lshlrev_b32 v{T}, v{T}, v{T+1}')
    a(f'v_bfe_u32 v{T+1}, v{vJ}, 1, 2')
    for n in range(4): a(f'v_cmp_eq_u32 {DM[n]}, {n}, v{T+1}')
    a(f'v_lshrrev_b32 v{T+2}, 3, v{vJ}')
    a(f'v_cvt_f32_u32 v{vM01}, v{T+2}')
    for n in range(4): a(f'v_cndmask_b32 v{MASK+n}, 0, v{T}, {DM[n]}')
    a(f'v_lshl_add_u32 v{AK}, v{vG}, 10, v{vY}')
    for t in range(1, 4): a(f'v_xor_b32 v{AK+t}, {64*t + 256*t}, v{AK}')
    a(f'v_lshl_add_u32 v{vWA}, v{vG}, 4, {sWB}')
    a(f's_mov_b32 {sCNT}, 32')
    a(f'v_and_b32 v{FR}, 1, v{vG}'); a(f'v_lshlrev_b32 v{FR}, 3, v{FR}')
    a(f'v_lshl_add_u32 v{FR}, v{vJ}, 4, v{FR}')
    a(f'v_lshrrev_b32 v{FR+2}, 1, v{vG}')
    a(f'v_lshl_add_u32 v{FR+2}, v{FR+2}, 2, v{FR}      ; output dword of the lane: d = 8c + 4(g&1) + 2(g>>1)')
    a(f'v_mov_b32 v{FR+1}, {DENA}')
    a(f's_lshl_b32 s15, {sC}, 10')
    a(f'v_lshl_add_u32 v{FR+3}, v{vL}, 4, s15')
    a(f's_lshl_b32 s15, {sC}, 2'); a(f's_add_u32 s15, s15, {DENA}')
    a(f'v_mov_b32 v{G}, s15')
    if tail:
        assert touch
        DV = FR + 32; vDA = G + 1
        a(f'v_and_b32 v{T}, 1, v{vG}'); a(f'v_lshlrev_b32 v{T}, {ib[0]}, v{T}')
        a(f'v_lshrrev_b32 v{T+1}, 1, v{vG}'); a(f'v_lshl_add_u32 v{T}, v{T+1}, {ib[1]}, v{T}')
        a(f'v_lshl_add_u32 v{T}, v{vJ}, 4, v{T}')
        a(f's_lshl_b32 s15, {sC}, {tb0}'); a(f's_add_u32 s15, s15, {hex(soff(31))}')
        a(f'v_add_u32 v{vDA}, s15, v{T}')
        x = {1: (3, -1, -1, 2), 2: (3, 4, 1, 2), 3: (4, 4, 1, 3), 4: (4, 4, 1, 2)}[tail]
        a(f's_cmp_ge_u32 {sC}, 4'); a(f's_cselect_b32 s33, {x[0]}, {x[1]}'); a(f's_cselect_b32 s35, 1, {x[2]}')
        a(f's_cmp_eq_u32 {sC}, 7'); a('s_cselect_b32 s33, -1, s33'); a(f's_cselect_b32 s34, {x[3]}, -1')
    npad = [0]
    def pad():
        if pads: a(f'L_pad{npad[0]}:'); a('s_cbranch_execz L_back'); npad[0] += 1
    if pads:
        c('each wave visits one line of the closing code once, so that it is in the instruction cache when needed')
        a('s_mov_b64 exec, 0')
        for k in range(7): a(f's_cmp_eq_u32 {sC}, {k}'); a(f's_cbranch_scc1 L_pad{k}')
        a('s_branch L_pad7')
        a('L_back:')
        a('s_mov_b64 exec, -1')
    a('s_waitcnt lgkmcnt(0)')
    a(f'v_readfirstlane_b32 {sC0}, v{G+2}')
    a('.p2align 3')
    a('L_v:')
    a(f'ds_read_b128 {q(W4)}, v{vWA}')
    a(f'v_add_u32 v{vWA}, 64, v{vWA}')
    for t in range(4): a(f'v_add_u32 v{T+4+t}, {sSLOT}, v{AK+t}')
    a(f's_add_u32 {sSLOT}, {sSLOT}, 0x8000'); a(f's_and_b32 {sSLOT}, {sSLOT}, 0x1ffff')
    a('s_waitcnt lgkmcnt(0)')
    for r in range(4): a(f'v_add_f32 v{W4+r}, {sC0}, v{W4+r}')
    for r in range(4): a(f'v_cvt_pk_bf16_f32 v{T+r}, 0, v{W4+r}')
    for r in range(4): a(f'v_fma_f32 v{T+r}, -v{T+r}, v{vM01}, v{W4+r}')
    a(f'v_add_f32 v{W4}, v{W4}, v{W4+1}'); a(f'v_add_f32 v{W4+2}, v{W4+2}, v{W4+3}')
    a(f'v_add_f32 v{vDEN}, v{vDEN}, v{W4}'); a(f'v_add_f32 v{vDEN}, v{vDEN}, v{W4+2}')
    for r in range(4): a(f'v_cvt_pk_bf16_f32 v{T+r}, v{T+r}, v{T+r}')
    a(f'v_mfma_f32_16x16x4_f32 {q(S)}, v{vONE}, v{vDEN}, 0')
    for r in range(4):
        for n in range(4): a(f'v_and_b32 v{P+4*r+n}, v{T+r}, v{MASK+n}')
    a(f'ds_write_b32 v{G}, v{S}')
    a(f's_cmp_eq_u32 {sCNT}, 32'); a('s_cbranch_scc1 L_v1')
    a('s_waitcnt lgkmcnt(0)')
    a('s_barrier')
    D0 = E; R0 = FR + 4
    def pkadd(d, x, y): a(f'v_pk_add_f32 v[{d}:{d+1}], v[{x}:{x+1}], v[{y}:{y+1}]')
    def den():
        pkadd(D0, D0, D0+2); pkadd(D0+4, D0+4, D0+6); pkadd(D0, D0, D0+4)
        a(f'v_add_f32 v{D0}, v{D0}, v{D0+1}')
        a(f'v_add_f32 v{D0}, {f32(1e-6)}, v{D0}')
        a(f'v_rcp_f32 v{D0+1}, v{D0}')
    def direct():
        for t in range(4): a(f'global_load_dwordx4 {q(DV+4*t)}, v{vDA}, s[8:9] offset:{256*t} nt')
    if tail:
        a(f's_cmp_eq_u32 {sCNT}, s33'); a('s_cbranch_scc1 L_d1')
        a(f's_cmp_eq_u32 {sCNT}, s35'); a('s_cbranch_scc1 L_d3')
    a('L_v1:')
    for t in range(4): a(f'ds_read_b128 {q(KR+4*t)}, v{T+4+t}')
    a(f's_sub_u32 {sCNT}, {sCNT}, 1')
    for t in range(4):
        a(f's_waitcnt lgkmcnt({3-t})')
        a(f'v_mfma_f32_16x16x32_bf16 {q(ACC)}, {q(P+4*t)}, {q(KR+4*t)}, {q(ACC)}')
    if tail: a(f's_cmp_eq_u32 {sCNT}, s34'); a('s_cbranch_scc1 L_d2')
    a(f's_cmp_lg_u32 {sCNT}, 0'); a('s_cbranch_scc1 L_v')
    c('---------------- cross-wave reduction, division, store')
    if not tail: a(f's_cmp_eq_u32 {sC}, 0'); a('s_cbranch_scc1 L_fin')
    a('L_wr:')
    a(f'ds_write_b128 v{FR+3}, {q(ACC)}')
    a('s_waitcnt lgkmcnt(0)')
    a('s_barrier')
    a('s_endpgm')
    if tail:
        a('L_d1:'); direct(); a('s_branch L_v1')
        pad()
        a('L_d2:'); direct(); a('s_branch L_v')
        pad()
        a('L_d3:')
        a(f's_cmp_eq_u32 {sC}, 7'); a('s_cbranch_scc1 L_fin')
        for t in range(4):
            a(f's_waitcnt vmcnt({3-t})')
            a(f'v_mfma_f32_16x16x32_bf16 {q(ACC)}, {q(P+4*t)}, {q(DV+4*t)}, {q(ACC)}')
        a('s_branch L_wr')
        pad()
        a('L_fin:')
        for i in range(2): a(f'ds_read_b128 {q(D0+4*i)}, v{FR+1} offset:{16*i}')
        a(f'v_lshlrev_b32 v{T}, 4, v{vL}')
        a('s_waitcnt lgkmcnt(0)')
        den()
        pad()
        a('s_barrier')
        for w in range(7): a(f'ds_read_b128 {q(R0+4*w)}, v{T} offset:{1024*w}')
        for w in range(1, 7):
            if w in (1, 4): pad()
            a(f's_waitcnt lgkmcnt({6-w})')
            pkadd(R0, R0, R0+4*w); pkadd(R0+2, R0+2, R0+4*w+2)
        pad()
        pkadd(R0, R0, ACC); pkadd(R0+2, R0+2, ACC+2)
        for t in range(4):
            a(f's_waitcnt vmcnt({3-t})')
            a(f'v_mfma_f32_16x16x32_bf16 {q(R0)}, {q(P+4*t)}, {q(DV+4*t)}, {q(R0)}')
    else:
        a('L_fin:')
        for i in range(2): a(f'ds_read_b128 {q(D0+4*i)}, v{FR+1} offset:{16*i}')
        a('s_barrier')
        for w in range(1, 8): a(f'ds_read_b128 {q(R0+4*w)}, v{FR+3} offset:{1024*w}')
        a('s_waitcnt lgkmcnt(7)')
        den()
        for w in range(1, 8):
            a(f's_waitcnt lgkmcnt({7-w})')
            src = ACC if w == 1 else R0
            pkadd(R0, src, R0+4*w); pkadd(R0+2, src+2, R0+4*w+2)
    pad()
    a(f'v_permlane32_swap_b32 v{R0}, v{R0+2}')
    a(f'v_permlane32_swap_b32 v{R0+1}, v{R0+3}')
    pkadd(R0, R0, R0+2)
    a(f'v_mul_f32 v{R0}, v{R0}, v{D0+1}'); a(f'v_mul_f32 v{R0+1}, v{R0+1}, v{D0+1}')
    a(f'v_cvt_pk_bf16_f32 v{R0}, v{R0}, v{R0+1}')
    a(f'buffer_store_dword v{R0}, v{FR+2}, {sOUT}, 0 offen')
    if stamps:
        if stamps == 3: a('s_sub_u32 s62, s60, s52')
        a('s_memrealtime s[66:67]'); a('s_memtime s[48:49]')
        a('s_getreg_b32 s60, hwreg(HW_REG_XCC_ID)'); a('s_getreg_b32 s61, hwreg(HW_REG_HW_ID)')
        a('s_waitcnt lgkmcnt(0)')
        a('s_sub_u32 s48, s48, s50')
        if stamps == 3: a('s_mov_b32 s61, s62')
        for i, s in enumerate(['s52','s53','s66','s67','s60','s61','s48','0']): a(f'v_mov_b32 v{P+i}, {s}')
        a('s_lshl_b32 s15, s2, 5'); a(f'v_mov_b32 v{T}, s15')
        a('s_mov_b64 exec, 1')
        a(f'global_store_dwordx4 v{T}, {q(P)}, s[70:71]')
        a(f'global_store_dwordx4 v{T}, {q(P+4)}, s[70:71] offset:16')
    a('L_done:')
    a('s_endpgm')
    body = a.finalize()
    tl = f""".section .rodata,"a"
.p2align 6
.amdhsa_kernel {KN}
  .amdhsa_next_free_vgpr {NV}
  .amdhsa_next_free_sgpr 72
  .amdhsa_accum_offset {(NV+3)//4*4}
  .amdhsa_group_segment_fixed_size 0
  .amdhsa_kernarg_size 56
  .amdhsa_user_sgpr_count 2
  .amdhsa_user_sgpr_kernarg_segment_ptr 1
  .amdhsa_system_sgpr_workgroup_id_x 1
  .amdhsa_float_denorm_mode_32 3
.end_amdhsa_kernel
"""
    sys.stderr.write(f'NV={NV} nops={a.nops}\n')
    return body + tl

if __name__ == '__main__':
    out = []
    for spec in sys.argv[1:]:
        kw = {}
        name = None
        for kv in spec.split(','):
            if not kv: continue
            k, v = kv.split('=')
            if k == 'out': name = v; continue
            if k not in ('so',):
                try: v = ast.literal_eval(v)
                except Exception: v = v.replace('+', ' ')
            kw[k] = v
        name = name or ('scratch/k/e_' + spec.replace('=', '').replace(',', '_').replace('+', '') + '.s')
        open(name, 'w').write(gen(**kw))
        out.append(name)
    print(' '.join(out))
```

```python
import sys, struct, ast
sys.path.insert(0, 'gen')
from asmlib import Asm
KN = 'standalone__linear_kernel_rfa__decode_kernel'
def f32(x): return '0x%08x' % struct.unpack('<I', struct.pack('<f', x))[0]

HEADER = """; Kernarg layout for this problem (56 bytes, ptrs only, base s[0:1]):
;   offset  32: d_out     shape=(8, 32, 1, 128) dtype=bfloat16 (2 bytes/elem)
"""
DOC = """;
; out = (phi_q phi_k^T) V / (phi_q phi_k^T 1 + 1e-6): with one query the [m,d] state is never formed, every key
;   wave 0      loader: streams all of K, then all of V (the two tensors are never read at the same time), through
"""

def gen(lo=18, hi=27, base=21, sh=4, gb=3, ofs=8, sen=6, last=61, n0=5, ev=3, so='ah.i.aj.a.c', spread=768,
        stamps=0, touch=1, prio=3, zwg=0, extra=1, omlate=0, heavy=0, asym=0, dv=-5, tail=1, pads=0, om=0, vpads=1, gb1=0, gt=20, ptn=1, kap=0, smp=0):
    bitof = lambda ch: int(ch) if ch.isdigit() else ord(ch) - ord('a') + 10
    ib = [11, 13]; tb0 = 14
    IOFF = [0, 1 << ib[0], 1 << ib[1], (1 << ib[0]) + (1 << ib[1])]
    COLS = [[bitof(ch) for ch in col] for col in (so.split('.') if '.' in so else list(so))]
    ROWS = {}
    for k, col in enumerate(COLS):
        for b in col: ROWS.setdefault(b, []).append(k)
    assert sorted(list(ROWS) + ib + [tb0, tb0+1, tb0+2]) == list(range(10, 20))
    soff = lambda st: sum(1 << b for b, ks in ROWS.items() if sum(st >> k & 1 for k in ks) & 1)
    assert len({soff(st) for st in range(32)}) == 32
    WINS = list(range(lo, hi + 1))
    CB = 16384
    PB = CB + 64*spread
    PTAG = 0x1000
    OMW = 131072; QS = OMW + 16384; DENA = QS + 256; C0A = DENA + 64; PHA = QS + 512; LDS = PHA + 2048
    a = Asm()
    def c(t): a.raw('; ' + t)
    a.raw(HEADER.rstrip())
    a.raw(f'; @launch grid=(256,1,1) block=(576,1,1) lds={LDS}')
    a.raw(DOC.rstrip())
    a.raw('.amdgcn_target "amdgcn-amd-amdhsa--gfx950"')
    a.raw('.text'); a.raw(f'.globl {KN}'); a.raw('.p2align 8'); a.raw(f'.type {KN},@function')
    a(f'{KN}:')
    nxt = [1]
    def V(n=1, al=1):
        b = (nxt[0] + al - 1)//al*al; nxt[0] = b + n; return b
    vL, vJ, vG, vY, vWA, vCS, vDUM = [V() for _ in range(7)]
    AK = V(4, 4); T = V(8, 4); G = V(4, 4); S = V(4, 4); PHI = V(8, 4); E = V(8, 4)
    KR = V(16, 4); P = V(16, 4); OM = V(64, 4)
    NV = nxt[0]
    W = S
    ACC = OM; MASK = OM + 4; vM01 = OM + 8; vDEN = OM + 9; vONE = OM + 10; W4 = OM + 12; FR = OM + 16
    def q(b): return f'v[{b}:{b+3}]'
    sX = 's[16:19]'
    sQ, sOUT = 's[20:23]', 's[24:27]'
    sW, sC, sSLOT, sCNT, sC0, sMODE, sOFF, sWB = 's3', 's28', 's29', 's30', 's32', 's36', 's37', 's38'
    DM = ['s[40:41]', 's[42:43]', 's[44:45]', 's[46:47]']
    a('s_load_dwordx8 s[4:11], s[0:1], 0')
    a(f'v_readfirstlane_b32 {sW}, v0')
    c('LDS image of a tile: load n, lane (g = lane>>4, p = lane&15) brings chunk p ^ (4g+n) of tile row j = 4g+n')
    a(f'v_and_b32 v{T}, 48, v0')
    a(f'v_lshlrev_b32 v{AK}, 4, v0')
    a(f'v_lshlrev_b32 v{T}, 2, v{T}')
    a('s_lshr_b32 s15, s2, 8'); a('s_cbranch_scc1 L_done')
    a(f'v_xor_b32 v{AK}, v{AK}, v{T}')
    a('s_lshl_b32 s19, 1, 17')
    a(f's_lshr_b32 {sW}, {sW}, 6'); a('s_cbranch_scc1 L_cons')
    c('================ loader wave')
    for n in range(1, 4): a(f'v_xor_b32 v{AK+n}, {16*n + IOFF[n] - 1024*n}, v{AK}')
    a('s_lshl_b32 s14, s2, 20')
    a('s_lshl_b32 s18, 1, 20')
    a('s_mov_b32 m0, 0'); a(f's_mov_b32 {sOFF}, 0')
    a('s_waitcnt lgkmcnt(0)')
    a('s_add_u32 s16, s6, s14'); a('s_addc_u32 s17, s7, 0')
    vPA, vPB, vBA, vP, vR, vS = T, T+1, T+2, T+3, T+4, T+5
    sVAR, sTURN, sR, sEN, sB, sN, sSL, sOFS, sMK, sS = 's31', 's32', 's33', 's34', 's35', 's36', 's24', 's25', 's26', 's27'
    def dma(n): a(f'buffer_load_dwordx4 v{AK+n}, {sX}, {sOFF} offen offset:{1024*n} nt lds')
    def load(n, w):
        k = w - 1
        im = k + (k - n)//4 + 1 + extra
        if smp: im = k + 2*((k - n)//4 + 1) + extra - 1
        assert im <= 47
        a(f's_waitcnt vmcnt({im})'); dma(n)
    a('L_s:')
    for n in range(4): dma(n)
    a('s_add_u32 m0, m0, 4096')
    a(f's_add_u32 {sOFF}, {sOFF}, {1 << tb0}')
    a(f's_cmp_lg_u32 {sOFF}, {hex(n0 << tb0)}'); a('s_cbranch_scc1 L_s')
    assert n0 in (4, 5, 6)
    c('balancing set-up while the first loads are in flight: table of this XCD, slot of this CU')
    a('s_load_dwordx4 s[20:23], s[0:1], 40')
    if prio: a(f's_setprio {prio}')
    a('s_getreg_b32 s15, hwreg(HW_REG_XCC_ID, 0, 3)')
    a(f's_getreg_b32 {sSL}, hwreg(HW_REG_HW_ID, 8, 4)')
    a('s_getreg_b32 s13, hwreg(HW_REG_HW_ID, 13, 2)')
    a('s_mul_i32 s15, s15, 1280'); a(f's_add_u32 s15, s15, {PB}')
    a(f's_lshl4_add_u32 {sSL}, s13, {sSL}')
    a(f'v_lshl_add_u32 v{vPB}, v0, 2, s15')
    a(f's_lshl2_add_u32 s13, {sSL}, s15'); a(f'v_mov_b32 v{vPA}, s13')
    a('s_add_u32 s15, s15, 252'); a(f'v_mov_b32 v{vBA}, s15')
    a(f'v_mov_b32 v{vP}, {hex(PTAG + n0)}'); a(f'v_mov_b32 v{vR}, 0')
    if not ptn: a(f's_lshr_b32 {sTURN}, s2, 3'); a(f's_lshl_b32 {sTURN}, {sTURN}, 1')
    a(f's_mov_b32 {sMK}, 0'); a(f's_mov_b32 {sOFS}, 0'); a(f's_mov_b32 {sCNT}, 0'); a(f's_mov_b32 {sEN}, 0')
    a('s_waitcnt lgkmcnt(0)')
    a(f'global_store_dword v{vPB}, v{vR}, s[22:23]')
    bi = WINS.index(base)
    order_ = [bi] + [i for d in range(1, len(WINS)) for i in (bi + d, bi - d) if 0 <= i < len(WINS)]
    VP = []
    def vpad(level=1):
        if vpads >= level and not (vpads == 1 and len(VP) == 8):
            VP.append(len(a.ins) + 1); a(f'L_vp{len(VP)-1}:'); a('s_branch L_vb' if vpads == 1 else 's_cbranch_execz L_vb')
    def variant(i):
        w = WINS[i]
        c(f'half a stage (4 tiles) with {w} loads in flight')
        a(f'L_w{i}:')
        for n in range(4): load(n, w)
        a(f'v_add_u32 v{vP}, 1, v{vP}')
        a('s_add_u32 m0, m0, 4096')
        a(f's_add_u32 {sOFF}, {sOFF}, {1 << tb0}')
        a(f'global_store_dword v{vPA}, v{vP}, s[22:23]')
        if smp: a(f'global_load_dword v{vR}, v{vPB}, s[22:23] nt')
        a(f's_andn2_b32 s15, {hex(3 << tb0)}, {sOFF}')
        a(f's_cbranch_scc1 L_w{i}')
        load(0, w)
        a(f'v_mov_b32 v{vS}, v{vR}')
        a(f'v_readlane_b32 {sN}, v{vS}, {sSL}')
        a(f'v_readlane_b32 {sB}, v{vS}, 63')
        a(f'v_subrev_u32 v{vS}, {sN}, v{vS}')
        a(f'v_writelane_b32 v{vS}, 0, 63')
        if i != bi: vpad(2)
        load(1, w)
        for x in (1, 2): a(f'v_add_u32_dpp v{vS}, v{vS}, v{vS} row_shr:{x} row_mask:0xf bank_mask:0xf bound_ctrl:1')
        load(2, w)
        for x in (4, 8): a(f'v_add_u32_dpp v{vS}, v{vS}, v{vS} row_shr:{x} row_mask:0xf bank_mask:0xf bound_ctrl:1')
        load(3, w)
        a(f'v_add_u32_dpp v{vS}, v{vS}, v{vS} row_bcast:15 row_mask:0xa bank_mask:0xf')
        a(f'v_add_u32 v{vP}, 1, v{vP}')
        a('s_add_u32 m0, m0, 4096')
        a(f'v_add_u32_dpp v{vS}, v{vS}, v{vS} row_bcast:31 row_mask:0xc bank_mask:0xf')
    variant(order_[0])
    a('L_se:')
    a(f'global_store_dword v{vPA}, v{vP}, s[22:23]')
    a(f'v_readlane_b32 {sS}, v{vS}, 63')
    a(f'global_load_dword v{vR}, v{vPB}, s[22:23] nt')
    a(f's_add_u32 {sOFF}, {sOFF}, {1 << tb0}')
    a(f's_add_u32 {sS}, {sS}, {sB}')
    a(f's_add_u32 {sS}, {sS}, {sOFS}')
    a(f's_and_b32 {sS}, {sS}, {sMK}')
    a(f's_ashr_i32 {sVAR}, {sS}, {sh}')
    a(f's_bitcmp1_b32 {sOFF}, {tb0+2}'); a('s_cbranch_scc0 L_st')
    if tail == 1: a(f's_cmp_eq_u32 {sCNT}, 63'); a('s_cbranch_scc1 L_le')
    a('L_top:')
    up, dn = len(WINS) - 1 - bi, bi
    for i in order_:
        d = i - bi
        if i == order_[-1]: a(f's_branch L_w{i}'); break
        if d == up and d > 0: a(f's_cmp_ge_i32 {sVAR}, {d}')
        elif d == -dn and d < 0: a(f's_cmp_le_i32 {sVAR}, {d}')
        else: a(f's_cmp_eq_i32 {sVAR}, {d}')
        a(f's_cbranch_scc1 L_w{i}')
    c('end of a stage: byte offset of the next one (row order chosen for DRAM channel/bank spread), hand-over barrier')
    a('L_st:')
    a('s_and_b32 m0, m0, 0x1ffff')
    a(f's_add_u32 {sCNT}, {sCNT}, 1')
    groups = {}
    for b, ks in ROWS.items():
        if len(ks) == 1: groups.setdefault(b - ks[0], []).append(b)
    left = sorted(groups); first = True
    while left:
        pick = [left[0]]
        for x in left[1:]:
            if x - pick[-1] >= 7: pick.append(x)
        left = [x for x in left if x not in pick]
        d = sOFF if first else 's15'
        if len(pick) > 1: a(f's_mul_i32 {d}, {sCNT}, {hex(sum(1 << x for x in pick))}')
        else: a(f's_lshl_b32 {d}, {sCNT}, {pick[0]}')
        a(f's_and_b32 {d}, {d}, {hex(sum(1 << b for x in pick for b in groups[x]))}')
        if not first: a(f's_or_b32 {sOFF}, {sOFF}, s15')
        first = False
    for b, ks in ROWS.items():
        if len(ks) > 1:
            a(f's_and_b32 s15, {sCNT}, {sum(1 << k for k in ks)}'); a('s_bcnt1_i32_b32 s15, s15')
            a('s_bitcmp1_b32 s15, 0'); a(f's_cselect_b32 s15, {1 << b}, 0'); a(f's_or_b32 {sOFF}, {sOFF}, s15')
    a(f's_cmp_le_u32 {sCNT}, 4'); a('s_cbranch_scc1 L_early')
    a(f's_sub_u32 s15, {sCNT}, {sTURN}'); a('s_add_u32 s15, s15, 1')
    a('s_cmp_le_u32 s15, 2'); a('s_cbranch_scc1 L_rep')
    a('L_c2:')
    a('s_barrier')
    if tail > 1: a(f's_cmp_eq_u32 {sCNT}, 63'); a('s_cbranch_scc1 L_le')
    a(f's_and_b32 s15, {sCNT}, 31'); a('s_cbranch_scc1 L_top')
    a('s_add_u32 s16, s8, s14'); a('s_addc_u32 s17, s9, 0')
    if dv: a(f's_add_u32 {sOFS}, {sOFS}, {dv}')
    if tail:
        a('s_branch L_top')
        c('the last tiles are fetched by their consumers straight into registers')
        a('L_le:')
        if tail == 1:
            a('s_barrier')
            a('s_waitcnt vmcnt(16)'); a('s_barrier')
        else:
            a('s_waitcnt vmcnt(32)'); a('s_barrier')
    else:
        a(f's_cmp_eq_u32 {sCNT}, 64'); a('s_cbranch_scc0 L_top')
        a('s_waitcnt vmcnt(32)'); a('s_barrier')
    a('s_waitcnt vmcnt(0)'); a('s_barrier')
    a('s_endpgm')
    a('L_early:')
    a(f's_cmp_eq_u32 {sCNT}, {ev}'); a('s_cbranch_scc1 L_e3')
    a(f's_cmp_gt_u32 {sCNT}, {ev}'); a(f's_cselect_b32 {sMK}, -1, 0')
    a('L_e4:')
    a(f's_bitcmp1_b32 {sCNT}, 0'); a('s_cbranch_scc1 L_top')
    a('s_waitcnt vmcnt(32)')
    a('s_branch L_c2')
    c('table slots that do not hold a running neighbour\'s count are redirected to the own slot')
    a('L_e3:')
    a(f'v_sub_u32 v{vS}, v{vR}, v{vP}')
    a(f'v_add_u32 v{vS}, 32, v{vS}')
    a(f'v_cmp_gt_u32 vcc, 64, v{vS}')
    a(f's_bcnt1_i32_b64 {sOFS}, vcc')
    if ptn:
        a(f's_bfm_b64 s[12:13], {sSL}, 0')
        a('s_and_b64 s[12:13], s[12:13], vcc')
        a(f's_bcnt1_i32_b64 {sTURN}, s[12:13]'); a(f's_lshl_b32 {sTURN}, {sTURN}, 1')
    a('s_bitset1_b32 vcc_hi, 31')
    a(f's_lshr_b32 {sOFS}, {sOFS}, 1'); a(f's_add_u32 {sOFS}, {sOFS}, {(1 << (sh-1)) + ofs}')
    a(f'v_cndmask_b32 v{vPB}, v{vPA}, v{vPB}, vcc')
    a('s_branch L_e4')
    vpad(3)
    c('this workgroup\'s turn: read the flag, then draw the arrival rank, then update the XCD bias')
    a('L_rep:')
    a('s_cmp_eq_u32 s15, 1'); a('s_cbranch_scc1 L_r1')
    a('s_cmp_eq_u32 s15, 2'); a('s_cbranch_scc1 L_r2')
    a(f's_cmp_ge_u32 {sCNT}, {sen + 6}'); a('s_cselect_b32 s15, 128, 0')
    if sen > 6: a(f's_cmp_lt_u32 {sCNT}, {sen - 1}'); a('s_cbranch_scc1 L_c2')
    a(f's_cmp_ge_u32 {sCNT}, {last}'); a('s_cbranch_scc1 L_c2')
    a(f's_load_dword {sEN}, s[20:21], s15')
    a('s_branch L_c2')
    vpad(3)
    a('L_r1:')
    a('s_waitcnt lgkmcnt(0)')
    a(f's_cmp_lg_u32 {sEN}, 1'); a('s_cbranch_scc1 L_c2')
    a(f's_mul_i32 s15, {sCNT}, {spread}'); a(f's_add_u32 s15, s15, {CB}')
    if gb1:
        a(f's_cmp_lt_u32 {sCNT}, {gt}'); a(f's_cselect_b32 {sR}, {2*gb1}, {2*gb}'); a(f's_cselect_b32 s12, {7*gb1}, {7*gb}')
    else: a(f's_mov_b32 {sR}, {2*gb}')
    a(f's_atomic_add {sR}, s[22:23], s15 glc')
    a('s_branch L_c2')
    a('L_r2:')
    a(f's_cmp_lg_u32 {sEN}, 1'); a('s_cbranch_scc1 L_c2')
    a(f's_ashr_i32 s15, {sB}, 1'); a('s_sub_u32 s15, s15, ' + ('s12' if gb1 else str(7*gb)))
    if kap:
        a(f's_sub_u32 s13, {sS}, {sB}'); a(f's_sub_u32 s13, s13, {(1 << (sh-1)) + ofs + dv//2 - 3}')
        a('s_max_i32 s13, s13, -48'); a('s_min_i32 s13, s13, 48')
        a(f's_mul_i32 s13, s13, {kap}'); a('s_ashr_i32 s13, s13, 3'); a('s_sub_u32 s15, s15, s13')
    if asym:
        a(f's_ashr_i32 s13, {sB}, 2')
        if asym == 1: a('s_min_i32 s13, s13, 0')
        a('s_add_u32 s15, s15, s13')
    a('s_waitcnt lgkmcnt(0)')
    a(f's_add_u32 s15, s15, {sR}')
    a(f'v_mov_b32 v{vS}, s15')
    a(f'global_store_dword v{vBA}, v{vS}, s[22:23]')
    a('s_branch L_c2')
    for k, i in enumerate(order_[1:]):
        vpad()
        variant(i)
        a('s_branch L_se')
    from asmlib import Ins
    for k, pos in enumerate(VP):
        if k + 8 < len(VP): a.ins[pos] = Ins(f's_cbranch_execz L_vp{k+8}')
    c('================ consumer waves')
    a('L_cons:')
    if stamps: a('s_memrealtime s[52:53]'); a('s_memtime s[50:51]')
    a('s_load_dwordx2 s[12:13], s[0:1], 32')
    a('s_load_dwordx4 s[68:71], s[0:1], 40')
    a(f's_sub_u32 {sC}, {sW}, 1')
    a(f'v_and_b32 v{vL}, 63, v0')
    a(f'v_and_b32 v{vJ}, 15, v0')
    a(f'v_lshrrev_b32 v{vG}, 4, v{vL}')
    a(f'v_and_b32 v{AK}, 0x3ff, v{AK}')
    a('s_mov_b32 s18, 0x4000')
    a('s_mov_b32 s22, 0x100'); a('s_mov_b32 s23, 0x20000')
    a('s_mov_b32 s26, 0x100'); a('s_mov_b32 s27, 0x20000')
    a('s_lshl_b32 s15, s2, 8')
    a(f's_lshl_b32 s14, {sC}, 11')
    a(f's_add_u32 {sWB}, s14, {OMW}')
    a(f's_and_b32 s39, {sC}, 1'); a('s_lshl_b32 s39, s39, 5')
    a(f'v_xor_b32 v{E}, s39, v{AK}'); a(f'v_xor_b32 v{E+1}, 16, v{E}')
    a(f'v_lshlrev_b32 v{E+2}, 2, v{vL}')
    a(f's_lshl_b32 s39, s2, 3'); a(f's_add_u32 s39, s39, {sC}')
    def consts():
        a(f'v_mov_b32 v{vCS}, {f32(-0.5 * 128.0 ** -0.5 * 1.4426950408889634)}')
        a(f'v_xor_b32 v{vY}, v{vG}, v{vJ}'); a(f'v_lshlrev_b32 v{vY}, 4, v{vY}')
        c('K / omega operand reads: tile row j sits in LDS row (j&3)*4 + (j>>2), its chunk c in slot c ^ j')
        a(f'v_and_b32 v{T}, 3, v{vJ}'); a(f'v_lshrrev_b32 v{T+1}, 2, v{vJ}')
        a(f'v_lshl_add_u32 v{T+2}, v{T}, 2, v{T+1}')
        a(f'v_lshl_add_u32 v{vWA}, v{T+2}, 2, {sWB}')
        a(f'v_lshl_add_u32 v{AK}, v{T+2}, 8, v{vY}')
        for t in range(1, 4): a(f'v_xor_b32 v{AK+t}, {64*t}, v{AK}')
        for t in range(4): a(f'v_add_u32 v{T+t}, {OMW}, v{AK+t}')
        a(f'v_lshlrev_b32 v{T+4}, 4, v{vG}')
        a(f'v_add_u32 v{T+4}, {QS}, v{T+4}')
        a(f'v_lshl_add_u32 v{T+5}, v{vL}, 4, {sWB}')
        a(f's_lshl_b32 {sSLOT}, {sC}, 12')
        a(f's_mov_b32 {sMODE}, 0')
        a(f's_mov_b32 {sCNT}, 32')
        a(f'v_and_b32 v{G+2}, 1, v{vL}'); a(f'v_lshlrev_b32 v{G+2}, 7, v{G+2}'); a(f'v_mov_b32 v{G+3}, 1')
    if omlate: consts()
    a('s_waitcnt lgkmcnt(0)')
    a('s_mov_b32 s16, s10'); a('s_mov_b32 s17, s11')
    a('s_add_u32 s20, s4, s15'); a('s_addc_u32 s21, s5, 0')
    a('s_add_u32 s24, s12, s15'); a('s_addc_u32 s25, s13, 0')
    if om == 2:
        a('s_lshr_b32 s13, s2, 3'); a('s_lshl_b32 s13, s13, 9')
        a(f'v_lshlrev_b32 v{E+3}, 7, v{vG}')
        a(f'buffer_load_dword v{vDUM}, v{E+3}, {sX}, s13 offen')
        a('s_waitcnt vmcnt(0)')
    if om != 1:
        a(f'buffer_load_dwordx4 {q(KR)}, v{E}, {sX}, s14 offen')
        if om == 3: a('s_waitcnt vmcnt(0)')
        a(f'buffer_load_dwordx4 {q(KR+4)}, v{E+1}, {sX}, s14 offen offset:1024')
    a(f's_cmp_lg_u32 {sC}, 0'); a('s_cbranch_scc1 L_om2')
    a(f's_mov_b32 m0, {QS}')
    a(f'buffer_load_dword v{E+2}, {sQ}, 0 offen lds      ; q row')
    a('L_om2:')
    c('one wave of one workgroup zeroes the rank counters in d_ws, then raises the flags in d_debug')
    a(f's_cmp_lg_u32 s39, {8*zwg + 7}'); a('s_cbranch_scc1 L_nz')
    a(f'v_mul_u32_u24 v{G}, {spread}, v{vL}'); a(f'v_add_u32 v{G}, {CB}, v{G}'); a(f'v_mov_b32 v{G+1}, 0')
    a(f'global_store_dword v{G}, v{G+1}, s[70:71] sc0 sc1')
    a('L_nz:')
    if not omlate: consts()
    if vpads:
        c('while omega is in flight: one hop each next to a loader loop that has not run yet (pulls it into the instruction cache)')
        if vpads > 1: a('s_mov_b64 exec, 0')
        for k in range(8): a(f's_cmp_eq_u32 {sC}, {k}'); a(f's_cbranch_scc1 L_vp{k}')
        a('L_vb:')
        if vpads > 1: a('s_mov_b64 exec, -1')
    a('s_waitcnt vmcnt(0)')
    a(f's_cmp_lg_u32 s39, {8*zwg + 7}'); a('s_cbranch_scc1 L_nf')
    a('s_mov_b64 exec, 3')
    a(f'global_store_dword v{G+2}, v{G+3}, s[68:69] sc0 sc1')
    a('s_mov_b64 exec, -1')
    a('L_nf:')
    a(f'v_lshlrev_b32 v{G+1}, 4, v{vL}'); a(f'v_add_u32 v{G+1}, {PHA}, v{G+1}')
    c('omega\' = bf16(omega * d^-1/4 * log2(e))')
    a(f's_mov_b32 s15, {f32(128.0 ** -0.25 * 1.4426950408889634)}')
    for i in range(8):
        a(f'v_lshlrev_b32 v{P+2*i}, 16, v{KR+i}'); a(f'v_and_b32 v{P+2*i+1}, 0xffff0000, v{KR+i}')
    for i in range(16): a(f'v_mul_f32 v{P+i}, s15, v{P+i}')
    for i in range(8): a(f'v_cvt_pk_bf16_f32 v{KR+i}, v{P+2*i}, v{P+2*i+1}')
    a(f'ds_write_b128 v{T+5}, {q(KR)}'); a(f'ds_write_b128 v{T+5}, {q(KR+4)} offset:1024')
    if touch:
        a('s_lshl_b32 s14, s2, 20'); a('s_add_u32 s8, s8, s14'); a('s_addc_u32 s9, s9, 0')
        a(f'v_mov_b32 v{T+6}, 0')
        a(f'global_load_dword v{vDUM}, v{T+6}, s[8:9] nt')
    a('s_waitcnt lgkmcnt(0)')
    a('s_barrier')
    for t in range(4):
        if t == 3: a('s_waitcnt lgkmcnt(4)')
        for mt in range(4): a(f'ds_read_b128 {q(OM+16*t+4*mt)}, v{T+t} offset:{4096*mt}')
    a(f's_cmp_lg_u32 {sC}, 0'); a('s_cbranch_scc1 L_k0')
    for t in range(4): a(f'ds_read_b128 {q(KR+4*t)}, v{T+4} offset:{64*t}')
    a('s_branch L_front')
    c('consumer 0 sent q through the K code: phi_q = exp(..)/8 + 1e-6;  PHI = phi_q/8 (absorbs phi_k\'s m^-1/2), row 0 only')
    a('L_phiq:')
    a(f'v_mov_b32 v{T+1}, {f32(1e-6)}')
    a(f'v_mov_b32 v{T+2}, {f32(0.125)}')
    for i in range(16): a(f'v_fma_f32 v{P+i}, v{P+i}, v{T+2}, v{T+1}')
    for i in range(16): a(f'v_mul_f32 v{P+i}, v{P+i}, v{T+2}')
    for i in range(8): a(f'v_cvt_pk_bf16_f32 v{PHI+i}, v{P+2*i}, v{P+2*i+1}')
    a(f'v_mov_b32 v{T+4}, 0x3f803f80')
    for i in range(5, 8): a(f'v_mov_b32 v{T+i}, v{T+4}')
    a(f'v_cmp_eq_u32 vcc, 0, v{vJ}')
    a(f'v_mfma_f32_16x16x32_bf16 {q(W)}, {q(T+4)}, {q(PHI)}, 0')
    a(f'v_mfma_f32_16x16x32_bf16 {q(W)}, {q(T+4)}, {q(PHI+4)}, {q(W)}')
    for i in range(8): a(f'v_cndmask_b32 v{E+i}, 0, v{PHI+i}, vcc')
    a(f'v_mul_f32 v{G+2}, {f32(8e-6)}, v{W}')
    a(f'v_mov_b32 v{G+3}, {C0A}')
    a(f'ds_write_b128 v{G+1}, {q(E)}'); a(f'ds_write_b128 v{G+1}, {q(E+4)} offset:1024')
    a(f'ds_write_b32 v{G+3}, v{G+2}')
    def addrs():
        for t in range(4): a(f'v_add_u32 v{T+t}, {sSLOT}, v{AK+t}')
        a(f's_add_u32 {sSLOT}, {sSLOT}, 0x8000'); a(f's_and_b32 {sSLOT}, {sSLOT}, 0x1ffff')
    a('L_k0:')
    a(f's_mov_b32 {sMODE}, 1')
    addrs()
    a('s_branch L_k1')
    a('L_phi:')
    a(f'ds_read_b128 {q(PHI)}, v{G+1}'); a(f'ds_read_b128 {q(PHI+4)}, v{G+1} offset:1024')
    a('s_waitcnt lgkmcnt(0)')
    a('s_branch L_kw')
    c('---------------- K pass')
    def w_mfma():
        a(f'v_mfma_f32_16x16x32_bf16 {q(W)}, {q(PHI)}, {q(E)}, 0')
        a(f'v_mfma_f32_16x16x32_bf16 {q(W)}, {q(PHI+4)}, {q(E+4)}, {q(W)}')
    def wr_w():
        a('s_mov_b64 exec, 0xffff')
        a(f'ds_write_b32 v{vWA}, v{W}')
        a('s_mov_b64 exec, -1')
    a('.p2align 3')
    a('L_k:')
    a('s_barrier')
    a(f's_cmp_eq_u32 {sCNT}, 31'); a('s_cbranch_scc1 L_phi')
    a('L_kw:')
    w_mfma()
    addrs()
    wr_w()
    a(f'v_add_u32 v{vWA}, 64, v{vWA}')
    a('L_k1:')
    for t in range(4): a(f'ds_read_b128 {q(KR+4*t)}, v{T+t}')
    a('L_front:')
    for t in range(4):
        a(f's_waitcnt lgkmcnt({3-t})')
        for d in range(4): a(f'v_dot2_f32_bf16 v{G}, v{KR+4*t+d}, v{KR+4*t+d}, ' + ('0' if t == 0 and d == 0 else f'v{G}'))
    a(f'v_mfma_f32_16x16x4_f32 {q(S)}, v{vCS}, v{G}, 0')
    for h in range(4*heavy): a(f'v_mfma_f32_16x16x32_bf16 {q(E)}, {q(OM+4*h)}, {q(KR+4*(h&3))}, 0')
    for mt in range(4):
        for t in range(4):
            a(f'v_mfma_f32_16x16x32_bf16 {q(P+4*mt)}, {q(OM+16*t+4*mt)}, {q(KR+4*t)}, ' + (q(S) if t == 0 else q(P+4*mt)))
    for i in range(16): a(f'v_exp_f32 v{P+i}, v{P+i}')
    a(f's_cmp_eq_u32 {sMODE}, 0'); a('s_cbranch_scc1 L_phiq')
    for i in range(8): a(f'v_cvt_pk_bf16_f32 v{E+i}, v{P+2*i}, v{P+2*i+1}')
    a(f's_sub_u32 {sCNT}, {sCNT}, 1')
    a(f's_cmp_lg_u32 {sCNT}, 0'); a('s_cbranch_scc1 L_k')
    a('s_barrier')
    w_mfma()
    a(f'v_mov_b32 v{G+3}, {C0A}')
    a(f'ds_read_b32 v{G+2}, v{G+3}')
    wr_w()
    if stamps == 3: a('s_memrealtime s[60:61]')
    c('---------------- V pass: A[i][8g+e] = w(row 4t+g) if e == i&7 (high part for i < 8, low part for i >= 8), B = V rows')
    for r in range(4): a(f'v_mov_b32 v{ACC+r}, 0')
    a(f'v_mov_b32 v{vDEN}, 0'); a(f'v_mov_b32 v{vONE}, 1.0')
    a(f'v_and_b32 v{T}, 1, v{vJ}'); a(f'v_lshlrev_b32 v{T}, 4, v{T}')
    a(f'v_mov_b32 v{T+1}, 0xffff'); a(f'v_lshlrev_b32 v{T}, v{T}, v{T+1}')
    a(f'v_bfe_u32 v{T+1}, v{vJ}, 1, 2')
    for n in range(4): a(f'v_cmp_eq_u32 {DM[n]}, {n}, v{T+1}')
    a(f'v_lshrrev_b32 v{T+2}, 3, v{vJ}')
    a(f'v_cvt_f32_u32 v{vM01}, v{T+2}')
    for n in range(4): a(f'v_cndmask_b32 v{MASK+n}, 0, v{T}, {DM[n]}')
    a(f'v_lshl_add_u32 v{AK}, v{vG}, 10, v{vY}')
    for t in range(1, 4): a(f'v_xor_b32 v{AK+t}, {64*t + 256*t}, v{AK}')
    a(f'v_lshl_add_u32 v{vWA}, v{vG}, 4, {sWB}')
    a(f's_mov_b32 {sCNT}, 32')
    a(f'v_and_b32 v{FR}, 1, v{vG}'); a(f'v_lshlrev_b32 v{FR}, 3, v{FR}')
    a(f'v_lshl_add_u32 v{FR}, v{vJ}, 4, v{FR}')
    a(f'v_lshrrev_b32 v{FR+2}, 1, v{vG}')
    a(f'v_lshl_add_u32 v{FR+2}, v{FR+2}, 2, v{FR}      ; output dword of the lane: d = 8c + 4(g&1) + 2(g>>1)')
    a(f'v_mov_b32 v{FR+1}, {DENA}')
    a(f's_lshl_b32 s15, {sC}, 10')
    a(f'v_lshl_add_u32 v{FR+3}, v{vL}, 4, s15')
    a(f's_lshl_b32 s15, {sC}, 2'); a(f's_add_u32 s15, s15, {DENA}')
    a(f'v_mov_b32 v{G}, s15')
    if tail:
        assert touch
        DV = FR + 32; vDA = G + 1
        a(f'v_and_b32 v{T}, 1, v{vG}'); a(f'v_lshlrev_b32 v{T}, {ib[0]}, v{T}')
        a(f'v_lshrrev_b32 v{T+1}, 1, v{vG}'); a(f'v_lshl_add_u32 v{T}, v{T+1}, {ib[1]}, v{T}')
        a(f'v_lshl_add_u32 v{T}, v{vJ}, 4, v{T}')
        a(f's_lshl_b32 s15, {sC}, {tb0}'); a(f's_add_u32 s15, s15, {hex(soff(31))}')
        a(f'v_add_u32 v{vDA}, s15, v{T}')
        x = {1: (3, -1, -1, 2), 2: (3, 4, 1, 2), 3: (4, 4, 1, 3), 4: (4, 4, 1, 2)}[tail]
        a(f's_cmp_ge_u32 {sC}, 4'); a(f's_cselect_b32 s33, {x[0]}, {x[1]}'); a(f's_cselect_b32 s35, 1, {x[2]}')
        a(f's_cmp_eq_u32 {sC}, 7'); a('s_cselect_b32 s33, -1, s33'); a(f's_cselect_b32 s34, {x[3]}, -1')
    npad = [0]
    def pad():
        if pads: a(f'L_pad{npad[0]}:'); a('s_cbranch_execz L_back'); npad[0] += 1
    if pads:
        c('each wave visits one line of the closing code once, so that it is in the instruction cache when needed')
        a('s_mov_b64 exec, 0')
        for k in range(7): a(f's_cmp_eq_u32 {sC}, {k}'); a(f's_cbranch_scc1 L_pad{k}')
        a('s_branch L_pad7')
        a('L_back:')
        a('s_mov_b64 exec, -1')
    a('s_waitcnt lgkmcnt(0)')
    a(f'v_readfirstlane_b32 {sC0}, v{G+2}')
    a('.p2align 3')
    a('L_v:')
    a(f'ds_read_b128 {q(W4)}, v{vWA}')
    a(f'v_add_u32 v{vWA}, 64, v{vWA}')
    for t in range(4): a(f'v_add_u32 v{T+4+t}, {sSLOT}, v{AK+t}')
    a(f's_add_u32 {sSLOT}, {sSLOT}, 0x8000'); a(f's_and_b32 {sSLOT}, {sSLOT}, 0x1ffff')
    a('s_waitcnt lgkmcnt(0)')
    for r in range(4): a(f'v_add_f32 v{W4+r}, {sC0}, v{W4+r}')
    for r in range(4): a(f'v_cvt_pk_bf16_f32 v{T+r}, 0, v{W4+r}')
    for r in range(4): a(f'v_fma_f32 v{T+r}, -v{T+r}, v{vM01}, v{W4+r}')
    a(f'v_add_f32 v{W4}, v{W4}, v{W4+1}'); a(f'v_add_f32 v{W4+2}, v{W4+2}, v{W4+3}')
    a(f'v_add_f32 v{vDEN}, v{vDEN}, v{W4}'); a(f'v_add_f32 v{vDEN}, v{vDEN}, v{W4+2}')
    for r in range(4): a(f'v_cvt_pk_bf16_f32 v{T+r}, v{T+r}, v{T+r}')
    a(f'v_mfma_f32_16x16x4_f32 {q(S)}, v{vONE}, v{vDEN}, 0')
    for r in range(4):
        for n in range(4): a(f'v_and_b32 v{P+4*r+n}, v{T+r}, v{MASK+n}')
    a(f'ds_write_b32 v{G}, v{S}')
    a(f's_cmp_eq_u32 {sCNT}, 32'); a('s_cbranch_scc1 L_v1')
    a('s_waitcnt lgkmcnt(0)')
    a('s_barrier')
    D0 = E; R0 = FR + 4
    def pkadd(d, x, y): a(f'v_pk_add_f32 v[{d}:{d+1}], v[{x}:{x+1}], v[{y}:{y+1}]')
    def den():
        pkadd(D0, D0, D0+2); pkadd(D0+4, D0+4, D0+6); pkadd(D0, D0, D0+4)
        a(f'v_add_f32 v{D0}, v{D0}, v{D0+1}')
        a(f'v_add_f32 v{D0}, {f32(1e-6)}, v{D0}')
        a(f'v_rcp_f32 v{D0+1}, v{D0}')
    def direct():
        for t in range(4): a(f'global_load_dwordx4 {q(DV+4*t)}, v{vDA}, s[8:9] offset:{256*t} nt')
    if tail:
        a(f's_cmp_eq_u32 {sCNT}, s33'); a('s_cbranch_scc1 L_d1')
        a(f's_cmp_eq_u32 {sCNT}, s35'); a('s_cbranch_scc1 L_d3')
    a('L_v1:')
    for t in range(4): a(f'ds_read_b128 {q(KR+4*t)}, v{T+4+t}')
    a(f's_sub_u32 {sCNT}, {sCNT}, 1')
    for t in range(4):
        a(f's_waitcnt lgkmcnt({3-t})')
        a(f'v_mfma_f32_16x16x32_bf16 {q(ACC)}, {q(P+4*t)}, {q(KR+4*t)}, {q(ACC)}')
    if tail: a(f's_cmp_eq_u32 {sCNT}, s34'); a('s_cbranch_scc1 L_d2')
    a(f's_cmp_lg_u32 {sCNT}, 0'); a('s_cbranch_scc1 L_v')
    c('---------------- cross-wave reduction, division, store')
    if not tail: a(f's_cmp_eq_u32 {sC}, 0'); a('s_cbranch_scc1 L_fin')
    a('L_wr:')
    a(f'ds_write_b128 v{FR+3}, {q(ACC)}')
    a('s_waitcnt lgkmcnt(0)')
    a('s_barrier')
    a('s_endpgm')
    if tail:
        a('L_d1:'); direct(); a('s_branch L_v1')
        pad()
        a('L_d2:'); direct(); a('s_branch L_v')
        pad()
        a('L_d3:')
        a(f's_cmp_eq_u32 {sC}, 7'); a('s_cbranch_scc1 L_fin')
        for t in range(4):
            a(f's_waitcnt vmcnt({3-t})')
            a(f'v_mfma_f32_16x16x32_bf16 {q(ACC)}, {q(P+4*t)}, {q(DV+4*t)}, {q(ACC)}')
        a('s_branch L_wr')
        pad()
        a('L_fin:')
        for i in range(2): a(f'ds_read_b128 {q(D0+4*i)}, v{FR+1} offset:{16*i}')
        a(f'v_lshlrev_b32 v{T}, 4, v{vL}')
        a('s_waitcnt lgkmcnt(0)')
        den()
        pad()
        a('s_barrier')
        for w in range(7): a(f'ds_read_b128 {q(R0+4*w)}, v{T} offset:{1024*w}')
        for w in range(1, 7):
            if w in (1, 4): pad()
            a(f's_waitcnt lgkmcnt({6-w})')
            pkadd(R0, R0, R0+4*w); pkadd(R0+2, R0+2, R0+4*w+2)
        pad()
        pkadd(R0, R0, ACC); pkadd(R0+2, R0+2, ACC+2)
        for t in range(4):
            a(f's_waitcnt vmcnt({3-t})')
            a(f'v_mfma_f32_16x16x32_bf16 {q(R0)}, {q(P+4*t)}, {q(DV+4*t)}, {q(R0)}')
    else:
        a('L_fin:')
        for i in range(2): a(f'ds_read_b128 {q(D0+4*i)}, v{FR+1} offset:{16*i}')
        a('s_barrier')
        for w in range(1, 8): a(f'ds_read_b128 {q(R0+4*w)}, v{FR+3} offset:{1024*w}')
        a('s_waitcnt lgkmcnt(7)')
        den()
        for w in range(1, 8):
            a(f's_waitcnt lgkmcnt({7-w})')
            src = ACC if w == 1 else R0
            pkadd(R0, src, R0+4*w); pkadd(R0+2, src+2, R0+4*w+2)
    pad()
    a(f'v_permlane32_swap_b32 v{R0}, v{R0+2}')
    a(f'v_permlane32_swap_b32 v{R0+1}, v{R0+3}')
    pkadd(R0, R0, R0+2)
    a(f'v_mul_f32 v{R0}, v{R0}, v{D0+1}'); a(f'v_mul_f32 v{R0+1}, v{R0+1}, v{D0+1}')
    a(f'v_cvt_pk_bf16_f32 v{R0}, v{R0}, v{R0+1}')
    a(f'buffer_store_dword v{R0}, v{FR+2}, {sOUT}, 0 offen')
    if stamps:
        if stamps == 3: a('s_sub_u32 s62, s60, s52')
        a('s_memrealtime s[66:67]'); a('s_memtime s[48:49]')
        a('s_getreg_b32 s60, hwreg(HW_REG_XCC_ID)'); a('s_getreg_b32 s61, hwreg(HW_REG_HW_ID)')
        a('s_waitcnt lgkmcnt(0)')
        a('s_sub_u32 s48, s48, s50')
        if stamps == 3: a('s_mov_b32 s61, s62')
        for i, s in enumerate(['s52','s53','s66','s67','s60','s61','s48','0']): a(f'v_mov_b32 v{P+i}, {s}')
        a('s_lshl_b32 s15, s2, 5'); a(f'v_mov_b32 v{T}, s15')
        a('s_mov_b64 exec, 1')
        a(f'global_store_dwordx4 v{T}, {q(P)}, s[70:71]')
        a(f'global_store_dwordx4 v{T}, {q(P+4)}, s[70:71] offset:16')
    a('L_done:')
    a('s_endpgm')
    body = a.finalize()
    tl = f""".section .rodata,"a"
.p2align 6
.amdhsa_kernel {KN}
  .amdhsa_next_free_vgpr {NV}
  .amdhsa_next_free_sgpr 72
  .amdhsa_accum_offset {(NV+3)//4*4}
  .amdhsa_group_segment_fixed_size 0
  .amdhsa_kernarg_size 56
  .amdhsa_user_sgpr_count 2
  .amdhsa_user_sgpr_kernarg_segment_ptr 1
  .amdhsa_system_sgpr_workgroup_id_x 1
  .amdhsa_float_denorm_mode_32 3
.end_amdhsa_kernel
"""
    sys.stderr.write(f'NV={NV} nops={a.nops}\n')
    return body + tl

if __name__ == '__main__':
    out = []
    for spec in sys.argv[1:]:
        kw = {}
        name = None
        for kv in spec.split(','):
            if not kv: continue
            k, v = kv.split('=')
            if k == 'out': name = v; continue
            if k not in ('so',):
                try: v = ast.literal_eval(v)
                except Exception: v = v.replace('+', ' ')
            kw[k] = v
        name = name or ('scratch/k/e_' + spec.replace('=', '').replace(',', '_').replace('+', '') + '.s')
        open(name, 'w').write(gen(**kw))
        out.append(name)
    print(' '.join(out))
```

```python
import sys, struct, ast
sys.path.insert(0, 'gen')
from asmlib import Asm
KN = 'standalone__linear_kernel_rfa__decode_kernel'
def f32(x): return '0x%08x' % struct.unpack('<I', struct.pack('<f', x))[0]

HEADER = """; Kernarg layout for this problem (56 bytes, ptrs only, base s[0:1]):
;   offset  32: d_out     shape=(8, 32, 1, 128) dtype=bfloat16 (2 bytes/elem)
"""
DOC = """;
; out = (phi_q phi_k^T) V / (phi_q phi_k^T 1 + 1e-6): with one query the [m,d] state is never formed, every key
;   wave 0      loader: streams all of K, then all of V (the two tensors are never read at the same time), through
"""

def gen(lo=18, hi=27, base=21, sh=4, gb=2, ofs=7, sen=6, last=61, n0=5, ev=3, so='ah.i.aj.a.c', spread=768,
        stamps=0, touch=1, prio=3, zwg=0, extra=1, omlate=0, heavy=0, asym=0, dv=-4, tail=1, pads=0, om=0, vpads=1, gb1=3, gt=32, ptn=1, kap=0, smp=0, touch2=0, two=0, fo=0, early=0, wpre=0, rel=16, ret=1, xr=0, skew=0, ret1=0, e0=0, et=0, hx=3):
    bitof = lambda ch: int(ch) if ch.isdigit() else ord(ch) - ord('a') + 10
    ib = [11, 13]; tb0 = 14
    IOFF = [0, 1 << ib[0], 1 << ib[1], (1 << ib[0]) + (1 << ib[1])]
    COLS = [[bitof(ch) for ch in col] for col in (so.split('.') if '.' in so else list(so))]
    ROWS = {}
    for k, col in enumerate(COLS):
        for b in col: ROWS.setdefault(b, []).append(k)
    assert sorted(list(ROWS) + ib + [tb0, tb0+1, tb0+2]) == list(range(10, 20))
    soff = lambda st: sum(1 << b for b, ks in ROWS.items() if sum(st >> k & 1 for k in ks) & 1)
    assert len({soff(st) for st in range(32)}) == 32
    WINS = list(range(lo, hi + 1))
    CB = 16384
    PB = CB + 64*spread
    PTAG = 0x1000
    OMW = 131072; QS = OMW + 16384; DENA = QS + 256; C0A = DENA + 64; PHA = QS + 512; LDS = PHA + 2048
    a = Asm()
    def c(t): a.raw('; ' + t)
    a.raw(HEADER.rstrip())
    a.raw(f'; @launch grid=(256,1,1) block=(576,1,1) lds={LDS}')
    a.raw(DOC.rstrip())
    a.raw('.amdgcn_target "amdgcn-amd-amdhsa--gfx950"')
    a.raw('.text'); a.raw(f'.globl {KN}'); a.raw('.p2align 8'); a.raw(f'.type {KN},@function')
    a(f'{KN}:')
    nxt = [1]
    def V(n=1, al=1):
        b = (nxt[0] + al - 1)//al*al; nxt[0] = b + n; return b
    vL, vJ, vG, vY, vWA, vCS, vDUM = [V() for _ in range(7)]
    AK = V(4, 4); T = V(8, 4); G = V(4, 4); S = V(4, 4); PHI = V(8, 4); E = V(8, 4)
    KR = V(16, 4); P = V(16, 4); OM = V(64, 4)
    if two: DV2 = V(16, 4)
    NV = nxt[0]
    W = S
    ACC = OM; MASK = OM + 4; vM01 = OM + 8; vDEN = OM + 9; vONE = OM + 10; W4 = OM + 12; FR = OM + 16
    def q(b): return f'v[{b}:{b+3}]'
    sX = 's[16:19]'
    sQ, sOUT = 's[20:23]', 's[24:27]'
    sW, sC, sSLOT, sCNT, sC0, sMODE, sOFF, sWB = 's3', 's28', 's29', 's30', 's32', 's36', 's37', 's38'
    DM = ['s[40:41]', 's[42:43]', 's[44:45]', 's[46:47]']
    if skew:
        tab = {1: [0,0,1,7,28,22,22,15], 2: [30,0,0,0,0,0,0,0], 3: [0,0,0,3,14,11,11,8]}[skew]
        a(f's_mov_b32 s4, {hex(sum(tab[i] << (8*i) for i in range(4)))}'); a(f's_mov_b32 s5, {hex(sum(tab[4+i] << (8*i) for i in range(4)))}')
        a('s_getreg_b32 s6, hwreg(HW_REG_XCC_ID, 0, 3)'); a('s_lshl_b32 s6, s6, 3'); a('s_lshr_b64 s[4:5], s[4:5], s6'); a('s_and_b32 s4, s4, 255')
        a('s_cbranch_scc0 L_sk1'); a('L_sk0:'); a('s_sleep 1'); a('s_sub_u32 s4, s4, 1'); a('s_cmp_lg_u32 s4, 0'); a('s_cbranch_scc1 L_sk0'); a('L_sk1:')
    a('s_load_dwordx8 s[4:11], s[0:1], 0')
    a(f'v_readfirstlane_b32 {sW}, v0')
    c('LDS image of a tile: load n, lane (g = lane>>4, p = lane&15) brings chunk p ^ (4g+n) of tile row j = 4g+n')
    a(f'v_and_b32 v{T}, 48, v0')
    a(f'v_lshlrev_b32 v{AK}, 4, v0')
    a(f'v_lshlrev_b32 v{T}, 2, v{T}')
    a('s_lshr_b32 s15, s2, 8'); a('s_cbranch_scc1 L_done')
    if hx == 3:
        a('s_lshl1_add_u32 s15, s2, 2')
        a('s_and_b32 s15, s15, 4'); a('s_xor_b32 s2, s2, s15')
    elif hx > 3:
        a(f's_and_b32 s15, s2, {hx}')
        a('s_bcnt1_i32_b32 s15, s15'); a('s_lshl_b32 s15, s15, 2'); a('s_and_b32 s15, s15, 4'); a('s_xor_b32 s2, s2, s15')
    elif hx:
        b = hx - 1
        a(f's_lshr_b32 s15, s2, {2 - b}'); a('s_xor_b32 s15, s15, s2'); a(f's_bitcmp1_b32 s15, {b}')
        a(f's_cselect_b32 s15, {4 | (1 << b)}, 0'); a('s_xor_b32 s2, s2, s15')
    a(f'v_xor_b32 v{AK}, v{AK}, v{T}')
    a('s_lshl_b32 s19, 1, 17')
    a(f's_lshr_b32 {sW}, {sW}, 6'); a('s_cbranch_scc1 L_cons')
    c('================ loader wave')
    for n in range(1, 4): a(f'v_xor_b32 v{AK+n}, {16*n + IOFF[n] - 1024*n}, v{AK}')
    a('s_lshl_b32 s14, s2, 20')
    a('s_lshl_b32 s18, 1, 20')
    a('s_mov_b32 m0, 0'); a(f's_mov_b32 {sOFF}, 0')
    a('s_waitcnt lgkmcnt(0)')
    a('s_add_u32 s16, s6, s14'); a('s_addc_u32 s17, s7, 0')
    vPA, vPB, vBA, vP, vR, vS = T, T+1, T+2, T+3, T+4, T+5
    sVAR, sTURN, sR, sEN, sB, sN, sSL, sOFS, sMK, sS = 's31', 's32', 's33', 's34', 's35', 's36', 's24', 's25', 's26', 's27'
    def dma(n): a(f'buffer_load_dwordx4 v{AK+n}, {sX}, {sOFF} offen offset:{1024*n} nt lds')
    def load(n, w):
        k = w - 1
        im = k + (k - n)//4 + 1 + extra
        if smp: im = k + 2*((k - n)//4 + 1) + extra - 1
        assert im <= 47
        a(f's_waitcnt vmcnt({im})'); dma(n)
    a('L_s:')
    for n in range(4): dma(n)
    a('s_add_u32 m0, m0, 4096')
    a(f's_add_u32 {sOFF}, {sOFF}, {1 << tb0}')
    a(f's_cmp_lg_u32 {sOFF}, {hex(n0 << tb0)}'); a('s_cbranch_scc1 L_s')
    assert n0 in (4, 5, 6)
    c('balancing set-up while the first loads are in flight: table of this XCD, slot of this CU')
    a('s_load_dwordx4 s[20:23], s[0:1], 40')
    if prio: a(f's_setprio {prio}')
    a('s_getreg_b32 s15, hwreg(HW_REG_XCC_ID, 0, 3)')
    a(f's_getreg_b32 {sSL}, hwreg(HW_REG_HW_ID, 8, 4)')
    a('s_getreg_b32 s13, hwreg(HW_REG_HW_ID, 13, 2)')
    a('s_mul_i32 s15, s15, 1280'); a(f's_add_u32 s15, s15, {PB}')
    a(f's_lshl4_add_u32 {sSL}, s13, {sSL}')
    a(f'v_lshl_add_u32 v{vPB}, v0, 2, s15')
    a(f's_lshl2_add_u32 s13, {sSL}, s15'); a(f'v_mov_b32 v{vPA}, s13')
    a('s_add_u32 s15, s15, 252'); a(f'v_mov_b32 v{vBA}, s15')
    a(f'v_mov_b32 v{vP}, {hex(PTAG + n0)}'); a(f'v_mov_b32 v{vR}, 0')
    if not ptn: a(f's_lshr_b32 {sTURN}, s2, 3'); a(f's_lshl_b32 {sTURN}, {sTURN}, 1')
    a(f's_mov_b32 {sMK}, 0'); a(f's_mov_b32 {sOFS}, 0'); a(f's_mov_b32 {sCNT}, 0'); a(f's_mov_b32 {sEN}, 0')
    a('s_waitcnt lgkmcnt(0)')
    a(f'global_store_dword v{vPB}, v{vR}, s[22:23]')
    bi = WINS.index(base)
    order_ = [bi] + [i for d in range(1, len(WINS)) for i in (bi + d, bi - d) if 0 <= i < len(WINS)]
    VP = []
    def vpad(level=1):
        if vpads >= level and not (vpads == 1 and len(VP) == 8):
            VP.append(len(a.ins) + 1); a(f'L_vp{len(VP)-1}:'); a('s_branch L_vb' if vpads == 1 else 's_cbranch_execz L_vb')
    def variant(i):
        w = WINS[i]
        c(f'half a stage (4 tiles) with {w} loads in flight')
        a(f'L_w{i}:')
        for n in range(4): load(n, w)
        a(f'v_add_u32 v{vP}, 1, v{vP}')
        a('s_add_u32 m0, m0, 4096')
        a(f's_add_u32 {sOFF}, {sOFF}, {1 << tb0}')
        a(f'global_store_dword v{vPA}, v{vP}, s[22:23]')
        if smp: a(f'global_load_dword v{vR}, v{vPB}, s[22:23] nt')
        a(f's_andn2_b32 s15, {hex(3 << tb0)}, {sOFF}')
        a(f's_cbranch_scc1 L_w{i}')
        load(0, w)
        a(f'v_mov_b32 v{vS}, v{vR}')
        a(f'v_readlane_b32 {sN}, v{vS}, {sSL}')
        a(f'v_readlane_b32 {sB}, v{vS}, 63')
        a(f'v_subrev_u32 v{vS}, {sN}, v{vS}')
        a(f'v_writelane_b32 v{vS}, 0, 63')
        if i != bi: vpad(2)
        load(1, w)
        for x in (1, 2): a(f'v_add_u32_dpp v{vS}, v{vS}, v{vS} row_shr:{x} row_mask:0xf bank_mask:0xf bound_ctrl:1')
        load(2, w)
        for x in (4, 8): a(f'v_add_u32_dpp v{vS}, v{vS}, v{vS} row_shr:{x} row_mask:0xf bank_mask:0xf bound_ctrl:1')
        load(3, w)
        a(f'v_add_u32_dpp v{vS}, v{vS}, v{vS} row_bcast:15 row_mask:0xa bank_mask:0xf')
        a(f'v_add_u32 v{vP}, 1, v{vP}')
        a('s_add_u32 m0, m0, 4096')
        a(f'v_add_u32_dpp v{vS}, v{vS}, v{vS} row_bcast:31 row_mask:0xc bank_mask:0xf')
    variant(order_[0])
    a('L_se:')
    a(f'global_store_dword v{vPA}, v{vP}, s[22:23]')
    a(f'v_readlane_b32 {sS}, v{vS}, 63')
    a(f'global_load_dword v{vR}, v{vPB}, s[22:23] nt')
    a(f's_add_u32 {sOFF}, {sOFF}, {1 << tb0}')
    a(f's_add_u32 {sS}, {sS}, {sB}')
    a(f's_add_u32 {sS}, {sS}, {sOFS}')
    a(f's_and_b32 {sS}, {sS}, {sMK}')
    a(f's_ashr_i32 {sVAR}, {sS}, {sh}')
    a(f's_bitcmp1_b32 {sOFF}, {tb0+2}'); a('s_cbranch_scc0 L_st')
    if tail == 1: a(f's_cmp_eq_u32 {sCNT}, 63'); a('s_cbranch_scc1 L_le')
    a('L_top:')
    up, dn = len(WINS) - 1 - bi, bi
    for i in order_:
        d = i - bi
        if i == order_[-1]: a(f's_branch L_w{i}'); break
        if d == up and d > 0: a(f's_cmp_ge_i32 {sVAR}, {d}')
        elif d == -dn and d < 0: a(f's_cmp_le_i32 {sVAR}, {d}')
        else: a(f's_cmp_eq_i32 {sVAR}, {d}')
        a(f's_cbranch_scc1 L_w{i}')
    c('end of a stage: byte offset of the next one (row order chosen for DRAM channel/bank spread), hand-over barrier')
    a('L_st:')
    a('s_and_b32 m0, m0, 0x1ffff')
    a(f's_add_u32 {sCNT}, {sCNT}, 1')
    groups = {}
    for b, ks in ROWS.items():
        if len(ks) == 1: groups.setdefault(b - ks[0], []).append(b)
    left = sorted(groups); first = True
    while left:
        pick = [left[0]]
        for x in left[1:]:
            if x - pick[-1] >= 7: pick.append(x)
        left = [x for x in left if x not in pick]
        d = sOFF if first else 's15'
        if len(pick) > 1: a(f's_mul_i32 {d}, {sCNT}, {hex(sum(1 << x for x in pick))}')
        else: a(f's_lshl_b32 {d}, {sCNT}, {pick[0]}')
        a(f's_and_b32 {d}, {d}, {hex(sum(1 << b for x in pick for b in groups[x]))}')
        if not first: a(f's_or_b32 {sOFF}, {sOFF}, s15')
        first = False
    for b, ks in ROWS.items():
        if len(ks) > 1:
            a(f's_and_b32 s15, {sCNT}, {sum(1 << k for k in ks)}'); a('s_bcnt1_i32_b32 s15, s15')
            a('s_bitcmp1_b32 s15, 0'); a(f's_cselect_b32 s15, {1 << b}, 0'); a(f's_or_b32 {sOFF}, {sOFF}, s15')
    if e0: a(f's_cmp_eq_u32 {sCNT}, {et}'); a(f's_cselect_b32 s15, {-e0}, 0'); a(f's_add_u32 {sOFS}, {sOFS}, s15')
    a(f's_cmp_le_u32 {sCNT}, 4'); a('s_cbranch_scc1 L_early')
    a(f's_sub_u32 s15, {sCNT}, {sTURN}'); a('s_add_u32 s15, s15, 1')
    a('s_cmp_le_u32 s15, 2'); a('s_cbranch_scc1 L_rep')
    a('L_c2:')
    a('s_barrier')
    if tail > 1: a(f's_cmp_eq_u32 {sCNT}, 63'); a('s_cbranch_scc1 L_le')
    a(f's_and_b32 s15, {sCNT}, 31'); a('s_cbranch_scc1 L_top')
    a('s_add_u32 s16, s8, s14'); a('s_addc_u32 s17, s9, 0')
    if dv: a(f's_add_u32 {sOFS}, {sOFS}, {dv}')
    if tail:
        a('s_branch L_top')
        c('the last tiles are fetched by their consumers straight into registers')
        a('L_le:')
        if tail == 1:
            a('s_barrier')
            a(f's_waitcnt vmcnt({rel})'); a('s_barrier')
        else:
            a('s_waitcnt vmcnt(32)'); a('s_barrier')
    else:
        a(f's_cmp_eq_u32 {sCNT}, 64'); a('s_cbranch_scc0 L_top')
        a('s_waitcnt vmcnt(32)'); a('s_barrier')
    a('s_waitcnt vmcnt(0)'); a('s_barrier')
    a('s_endpgm')
    a('L_early:')
    a(f's_cmp_eq_u32 {sCNT}, {ev}'); a('s_cbranch_scc1 L_e3')
    a(f's_cmp_gt_u32 {sCNT}, {ev}'); a(f's_cselect_b32 {sMK}, -1, 0')
    a('L_e4:')
    a(f's_bitcmp1_b32 {sCNT}, 0'); a('s_cbranch_scc1 L_top')
    a('s_waitcnt vmcnt(32)')
    a('s_branch L_c2')
    c('table slots that do not hold a running neighbour\'s count are redirected to the own slot')
    a('L_e3:')
    a(f'v_sub_u32 v{vS}, v{vR}, v{vP}')
    a(f'v_add_u32 v{vS}, 32, v{vS}')
    a(f'v_cmp_gt_u32 vcc, 64, v{vS}')
    a(f's_bcnt1_i32_b64 {sOFS}, vcc')
    if ptn:
        a(f's_bfm_b64 s[12:13], {sSL}, 0')
        a('s_and_b64 s[12:13], s[12:13], vcc')
        a(f's_bcnt1_i32_b64 {sTURN}, s[12:13]'); a(f's_lshl_b32 {sTURN}, {sTURN}, 1')
        if xr: a(f's_cmp_lt_u32 {sTURN}, 6'); a('s_cselect_b32 s12, 7, 0'); a(f's_add_u32 {sTURN}, {sTURN}, s12')
    a('s_bitset1_b32 vcc_hi, 31')
    a(f's_lshr_b32 {sOFS}, {sOFS}, 1'); a(f's_add_u32 {sOFS}, {sOFS}, {(1 << (sh-1)) + ofs + e0}')
    a(f'v_cndmask_b32 v{vPB}, v{vPA}, v{vPB}, vcc')
    a('s_branch L_e4')
    vpad(3)
    c('this workgroup\'s turn: read the flag, then draw the arrival rank, then update the XCD bias')
    a('L_rep:')
    a('s_cmp_eq_u32 s15, 1'); a('s_cbranch_scc1 L_r1')
    a('s_cmp_eq_u32 s15, 2'); a('s_cbranch_scc1 L_r2')
    a(f's_cmp_ge_u32 {sCNT}, {sen + 6}'); a('s_cselect_b32 s15, 128, 0')
    if sen > 6: a(f's_cmp_lt_u32 {sCNT}, {sen - 1}'); a('s_cbranch_scc1 L_c2')
    a(f's_cmp_ge_u32 {sCNT}, {last}'); a('s_cbranch_scc1 L_c2')
    a(f's_load_dword {sEN}, s[20:21], s15')
    a('s_branch L_c2')
    vpad(3)
    a('L_r1:')
    a('s_waitcnt lgkmcnt(0)')
    a(f's_cmp_lg_u32 {sEN}, 1'); a('s_cbranch_scc1 L_c2')
    a(f's_mul_i32 s15, {sCNT}, {spread}'); a(f's_add_u32 s15, s15, {CB}')
    if gb1:
        a(f's_cmp_lt_u32 {sCNT}, {gt}'); a(f's_cselect_b32 {sR}, {2*gb1}, {2*gb}'); a(f's_cselect_b32 s12, {7*gb1}, {7*gb}')
    else: a(f's_mov_b32 {sR}, {2*gb}')
    a(f's_atomic_add {sR}, s[22:23], s15 glc')
    a('s_branch L_c2')
    a('L_r2:')
    a(f's_cmp_lg_u32 {sEN}, 1'); a('s_cbranch_scc1 L_c2')
    a(f's_ashr_i32 s15, {sB}, {ret}'); a('s_sub_u32 s15, s15, ' + ('s12' if gb1 else str(7*gb)))
    if ret1:
        a(f's_ashr_i32 s13, {sB}, {ret1}'); a(f's_cmp_le_u32 {sCNT}, {gt}'); a('s_cselect_b32 s13, s13, 0'); a('s_add_u32 s15, s15, s13')
    if kap:
        a(f's_sub_u32 s13, {sS}, {sB}'); a(f's_sub_u32 s13, s13, {(1 << (sh-1)) + ofs + dv//2 - 3}')
        a('s_max_i32 s13, s13, -48'); a('s_min_i32 s13, s13, 48')
        a(f's_mul_i32 s13, s13, {kap}'); a('s_ashr_i32 s13, s13, 3'); a('s_sub_u32 s15, s15, s13')
    if asym:
        a(f's_ashr_i32 s13, {sB}, 2')
        if asym == 1: a('s_min_i32 s13, s13, 0')
        a('s_add_u32 s15, s15, s13')
    a('s_waitcnt lgkmcnt(0)')
    a(f's_add_u32 s15, s15, {sR}')
    a(f'v_mov_b32 v{vS}, s15')
    a(f'global_store_dword v{vBA}, v{vS}, s[22:23]')
    a('s_branch L_c2')
    for k, i in enumerate(order_[1:]):
        vpad()
        variant(i)
        a('s_branch L_se')
    from asmlib import Ins
    for k, pos in enumerate(VP):
        if k + 8 < len(VP): a.ins[pos] = Ins(f's_cbranch_execz L_vp{k+8}')
    c('================ consumer waves')
    a('L_cons:')
    if stamps: a('s_memrealtime s[52:53]'); a('s_memtime s[50:51]')
    a('s_load_dwordx2 s[12:13], s[0:1], 32')
    a('s_load_dwordx4 s[68:71], s[0:1], 40')
    a(f's_sub_u32 {sC}, {sW}, 1')
    a(f'v_and_b32 v{vL}, 63, v0')
    a(f'v_and_b32 v{vJ}, 15, v0')
    a(f'v_lshrrev_b32 v{vG}, 4, v{vL}')
    a(f'v_and_b32 v{AK}, 0x3ff, v{AK}')
    a('s_mov_b32 s18, 0x4000')
    a('s_mov_b32 s22, 0x100'); a('s_mov_b32 s23, 0x20000')
    a('s_mov_b32 s26, 0x100'); a('s_mov_b32 s27, 0x20000')
    a('s_lshl_b32 s15, s2, 8')
    a(f's_lshl_b32 s14, {sC}, 11')
    a(f's_add_u32 {sWB}, s14, {OMW}')
    a(f's_and_b32 s39, {sC}, 1'); a('s_lshl_b32 s39, s39, 5')
    a(f'v_xor_b32 v{E}, s39, v{AK}'); a(f'v_xor_b32 v{E+1}, 16, v{E}')
    a(f'v_lshlrev_b32 v{E+2}, 2, v{vL}')
    a(f's_lshl_b32 s39, s2, 3'); a(f's_add_u32 s39, s39, {sC}')
    def consts():
        a(f'v_mov_b32 v{vCS}, {f32(-0.5 * 128.0 ** -0.5 * 1.4426950408889634)}')
        a(f'v_xor_b32 v{vY}, v{vG}, v{vJ}'); a(f'v_lshlrev_b32 v{vY}, 4, v{vY}')
        c('K / omega operand reads: tile row j sits in LDS row (j&3)*4 + (j>>2), its chunk c in slot c ^ j')
        a(f'v_and_b32 v{T}, 3, v{vJ}'); a(f'v_lshrrev_b32 v{T+1}, 2, v{vJ}')
        a(f'v_lshl_add_u32 v{T+2}, v{T}, 2, v{T+1}')
        a(f'v_lshl_add_u32 v{vWA}, v{T+2}, 2, {sWB}')
        a(f'v_lshl_add_u32 v{AK}, v{T+2}, 8, v{vY}')
        for t in range(1, 4): a(f'v_xor_b32 v{AK+t}, {64*t}, v{AK}')
        for t in range(4): a(f'v_add_u32 v{T+t}, {OMW}, v{AK+t}')
        a(f'v_lshlrev_b32 v{T+4}, 4, v{vG}')
        a(f'v_add_u32 v{T+4}, {QS}, v{T+4}')
        a(f'v_lshl_add_u32 v{T+5}, v{vL}, 4, {sWB}')
        a(f's_lshl_b32 {sSLOT}, {sC}, 12')
        a(f's_mov_b32 {sMODE}, 0')
        a(f's_mov_b32 {sCNT}, 32')
        a(f'v_and_b32 v{G+2}, 1, v{vL}'); a(f'v_lshlrev_b32 v{G+2}, 7, v{G+2}'); a(f'v_mov_b32 v{G+3}, 1')
    if omlate: consts()
    a('s_waitcnt lgkmcnt(0)')
    a('s_mov_b32 s16, s10'); a('s_mov_b32 s17, s11')
    a('s_add_u32 s20, s4, s15'); a('s_addc_u32 s21, s5, 0')
    a('s_add_u32 s24, s12, s15'); a('s_addc_u32 s25, s13, 0')
    if om == 2:
        a('s_lshr_b32 s13, s2, 3'); a('s_lshl_b32 s13, s13, 9')
        a(f'v_lshlrev_b32 v{E+3}, 7, v{vG}')
        a(f'buffer_load_dword v{vDUM}, v{E+3}, {sX}, s13 offen')
        a('s_waitcnt vmcnt(0)')
    if om != 1:
        a(f'buffer_load_dwordx4 {q(KR)}, v{E}, {sX}, s14 offen')
        if om == 3: a('s_waitcnt vmcnt(0)')
        a(f'buffer_load_dwordx4 {q(KR+4)}, v{E+1}, {sX}, s14 offen offset:1024')
    a(f's_cmp_lg_u32 {sC}, 0'); a('s_cbranch_scc1 L_om2')
    a(f's_mov_b32 m0, {QS}')
    a(f'buffer_load_dword v{E+2}, {sQ}, 0 offen lds      ; q row')
    a('L_om2:')
    c('one wave of one workgroup zeroes the rank counters in d_ws, then raises the flags in d_debug')
    a(f's_cmp_lg_u32 s39, {8*zwg + 7}'); a('s_cbranch_scc1 L_nz')
    a(f'v_mul_u32_u24 v{G}, {spread}, v{vL}'); a(f'v_add_u32 v{G}, {CB}, v{G}'); a(f'v_mov_b32 v{G+1}, 0')
    a(f'global_store_dword v{G}, v{G+1}, s[70:71] sc0 sc1')
    a('L_nz:')
    if not omlate: consts()
    if vpads:
        c('while omega is in flight: one hop each next to a loader loop that has not run yet (pulls it into the instruction cache)')
        if vpads > 1: a('s_mov_b64 exec, 0')
        for k in range(8): a(f's_cmp_eq_u32 {sC}, {k}'); a(f's_cbranch_scc1 L_vp{k}')
        a('L_vb:')
        if vpads > 1: a('s_mov_b64 exec, -1')
    a('s_waitcnt vmcnt(0)')
    a(f's_cmp_lg_u32 s39, {8*zwg + 7}'); a('s_cbranch_scc1 L_nf')
    a('s_mov_b64 exec, 3')
    a(f'global_store_dword v{G+2}, v{G+3}, s[68:69] sc0 sc1')
    a('s_mov_b64 exec, -1')
    a('L_nf:')
    a(f'v_lshlrev_b32 v{G+1}, 4, v{vL}'); a(f'v_add_u32 v{G+1}, {PHA}, v{G+1}')
    c('omega\' = bf16(omega * d^-1/4 * log2(e))')
    a(f's_mov_b32 s15, {f32(128.0 ** -0.25 * 1.4426950408889634)}')
    for i in range(8):
        a(f'v_lshlrev_b32 v{P+2*i}, 16, v{KR+i}'); a(f'v_and_b32 v{P+2*i+1}, 0xffff0000, v{KR+i}')
    for i in range(16): a(f'v_mul_f32 v{P+i}, s15, v{P+i}')
    for i in range(8): a(f'v_cvt_pk_bf16_f32 v{KR+i}, v{P+2*i}, v{P+2*i+1}')
    a(f'ds_write_b128 v{T+5}, {q(KR)}'); a(f'ds_write_b128 v{T+5}, {q(KR+4)} offset:1024')
    if touch:
        a('s_lshl_b32 s14, s2, 20'); a('s_add_u32 s8, s8, s14'); a('s_addc_u32 s9, s9, 0')
        a(f'v_mov_b32 v{T+6}, 0')
        a(f'global_load_dword v{vDUM}, v{T+6}, s[8:9] nt')
    if stamps == 4: a('s_memrealtime s[54:55]')
    a('s_waitcnt lgkmcnt(0)')
    a('s_barrier')
    if stamps == 4: a('s_memrealtime s[56:57]'); a('s_waitcnt lgkmcnt(0)')
    for t in range(4):
        if t == 3: a('s_waitcnt lgkmcnt(4)')
        for mt in range(4): a(f'ds_read_b128 {q(OM+16*t+4*mt)}, v{T+t} offset:{4096*mt}')
    a(f's_cmp_lg_u32 {sC}, 0'); a('s_cbranch_scc1 L_k0')
    for t in range(4): a(f'ds_read_b128 {q(KR+4*t)}, v{T+4} offset:{64*t}')
    a('s_branch L_front')
    c('consumer 0 sent q through the K code: phi_q = exp(..)/8 + 1e-6;  PHI = phi_q/8 (absorbs phi_k\'s m^-1/2), row 0 only')
    a('L_phiq:')
    a(f'v_mov_b32 v{T+1}, {f32(1e-6)}')
    a(f'v_mov_b32 v{T+2}, {f32(0.125)}')
    for i in range(16): a(f'v_fma_f32 v{P+i}, v{P+i}, v{T+2}, v{T+1}')
    for i in range(16): a(f'v_mul_f32 v{P+i}, v{P+i}, v{T+2}')
    for i in range(8): a(f'v_cvt_pk_bf16_f32 v{PHI+i}, v{P+2*i}, v{P+2*i+1}')
    a(f'v_mov_b32 v{T+4}, 0x3f803f80')
    for i in range(5, 8): a(f'v_mov_b32 v{T+i}, v{T+4}')
    a(f'v_cmp_eq_u32 vcc, 0, v{vJ}')
    a(f'v_mfma_f32_16x16x32_bf16 {q(W)}, {q(T+4)}, {q(PHI)}, 0')
    a(f'v_mfma_f32_16x16x32_bf16 {q(W)}, {q(T+4)}, {q(PHI+4)}, {q(W)}')
    for i in range(8): a(f'v_cndmask_b32 v{E+i}, 0, v{PHI+i}, vcc')
    a(f'v_mul_f32 v{G+2}, {f32(8e-6)}, v{W}')
    a(f'v_mov_b32 v{G+3}, {C0A}')
    a(f'ds_write_b128 v{G+1}, {q(E)}'); a(f'ds_write_b128 v{G+1}, {q(E+4)} offset:1024')
    a(f'ds_write_b32 v{G+3}, v{G+2}')
    def addrs():
        for t in range(4): a(f'v_add_u32 v{T+t}, {sSLOT}, v{AK+t}')
        a(f's_add_u32 {sSLOT}, {sSLOT}, 0x8000'); a(f's_and_b32 {sSLOT}, {sSLOT}, 0x1ffff')
    a('L_k0:')
    a(f's_mov_b32 {sMODE}, 1')
    addrs()
    a('s_branch L_k1')
    a('L_phi:')
    if stamps == 4: a('s_memrealtime s[60:61]')
    a(f'ds_read_b128 {q(PHI)}, v{G+1}'); a(f'ds_read_b128 {q(PHI+4)}, v{G+1} offset:1024')
    a('s_waitcnt lgkmcnt(0)')
    a('s_branch L_kw')
    c('---------------- K pass')
    def w_mfma():
        a(f'v_mfma_f32_16x16x32_bf16 {q(W)}, {q(PHI)}, {q(E)}, 0')
        a(f'v_mfma_f32_16x16x32_bf16 {q(W)}, {q(PHI+4)}, {q(E+4)}, {q(W)}')
    def wr_w():
        a('s_mov_b64 exec, 0xffff')
        a(f'ds_write_b32 v{vWA}, v{W}')
        a('s_mov_b64 exec, -1')
    a('.p2align 3')
    a('L_k:')
    if stamps == 4:
        a(f's_cmp_eq_u32 {sCNT}, 31'); a('s_cbranch_scc0 L_z1'); a('s_memrealtime s[58:59]'); a('s_waitcnt lgkmcnt(0)'); a('L_z1:')
    a('s_barrier')
    a(f's_cmp_eq_u32 {sCNT}, 31'); a('s_cbranch_scc1 L_phi')
    a('L_kw:')
    w_mfma()
    addrs()
    wr_w()
    a(f'v_add_u32 v{vWA}, 64, v{vWA}')
    a('L_k1:')
    for t in range(4): a(f'ds_read_b128 {q(KR+4*t)}, v{T+t}')
    a('L_front:')
    for t in range(4):
        a(f's_waitcnt lgkmcnt({3-t})')
        for d in range(4): a(f'v_dot2_f32_bf16 v{G}, v{KR+4*t+d}, v{KR+4*t+d}, ' + ('0' if t == 0 and d == 0 else f'v{G}'))
    a(f'v_mfma_f32_16x16x4_f32 {q(S)}, v{vCS}, v{G}, 0')
    for h in range(4*heavy): a(f'v_mfma_f32_16x16x32_bf16 {q(E)}, {q(OM+4*h)}, {q(KR+4*(h&3))}, 0')
    for mt in range(4):
        for t in range(4):
            a(f'v_mfma_f32_16x16x32_bf16 {q(P+4*mt)}, {q(OM+16*t+4*mt)}, {q(KR+4*t)}, ' + (q(S) if t == 0 else q(P+4*mt)))
    for i in range(16): a(f'v_exp_f32 v{P+i}, v{P+i}')
    a(f's_cmp_eq_u32 {sMODE}, 0'); a('s_cbranch_scc1 L_phiq')
    for i in range(8): a(f'v_cvt_pk_bf16_f32 v{E+i}, v{P+2*i}, v{P+2*i+1}')
    a(f's_sub_u32 {sCNT}, {sCNT}, 1')
    a(f's_cmp_lg_u32 {sCNT}, 0'); a('s_cbranch_scc1 L_k')
    a('s_barrier')
    w_mfma()
    a(f'v_mov_b32 v{G+3}, {C0A}')
    a(f'ds_read_b32 v{G+2}, v{G+3}')
    wr_w()
    if stamps == 3: a('s_memrealtime s[60:61]')
    if stamps == 4:
        for i in range(4): a(f's_sub_u32 s15, s{54+2*i}, s52'); a(f'v_mov_b32 v{KR+i}, s15')
        a('s_lshl_b32 s15, s39, 4'); a('s_add_u32 s15, s15, 0x200000'); a(f'v_mov_b32 v{T}, s15')
        a(f'global_store_dwordx4 v{T}, {q(KR)}, s[70:71]')
    c('---------------- V pass: A[i][8g+e] = w(row 4t+g) if e == i&7 (high part for i < 8, low part for i >= 8), B = V rows')
    for r in range(4): a(f'v_mov_b32 v{ACC+r}, 0')
    a(f'v_mov_b32 v{vDEN}, 0'); a(f'v_mov_b32 v{vONE}, 1.0')
    a(f'v_and_b32 v{T}, 1, v{vJ}'); a(f'v_lshlrev_b32 v{T}, 4, v{T}')
    a(f'v_mov_b32 v{T+1}, 0xffff'); a(f'v_lshlrev_b32 v{T}, v{T}, v{T+1}')
    a(f'v_bfe_u32 v{T+1}, v{vJ}, 1, 2')
    for n in range(4): a(f'v_cmp_eq_u32 {DM[n]}, {n}, v{T+1}')
    a(f'v_lshrrev_b32 v{T+2}, 3, v{vJ}')
    a(f'v_cvt_f32_u32 v{vM01}, v{T+2}')
    for n in range(4): a(f'v_cndmask_b32 v{MASK+n}, 0, v{T}, {DM[n]}')
    a(f'v_lshl_add_u32 v{AK}, v{vG}, 10, v{vY}')
    for t in range(1, 4): a(f'v_xor_b32 v{AK+t}, {64*t + 256*t}, v{AK}')
    a(f'v_lshl_add_u32 v{vWA}, v{vG}, 4, {sWB}')
    a(f's_mov_b32 {sCNT}, 32')
    a(f'v_and_b32 v{FR}, 1, v{vG}'); a(f'v_lshlrev_b32 v{FR}, 3, v{FR}')
    a(f'v_lshl_add_u32 v{FR}, v{vJ}, 4, v{FR}')
    a(f'v_lshrrev_b32 v{FR+2}, 1, v{vG}')
    a(f'v_lshl_add_u32 v{FR+2}, v{FR+2}, 2, v{FR}      ; output dword of the lane: d = 8c + 4(g&1) + 2(g>>1)')
    a(f'v_mov_b32 v{FR+1}, {DENA}')
    a(f's_lshl_b32 s15, {sC}, 10')
    a(f'v_lshl_add_u32 v{FR+3}, v{vL}, 4, s15')
    a(f's_lshl_b32 s15, {sC}, 2'); a(f's_add_u32 s15, s15, {DENA}')
    a(f'v_mov_b32 v{G}, s15')
    if tail:
        assert touch
        DV = FR + 32; vDA = G + 1
        a(f'v_and_b32 v{T}, 1, v{vG}'); a(f'v_lshlrev_b32 v{T}, {ib[0]}, v{T}')
        a(f'v_lshrrev_b32 v{T+1}, 1, v{vG}'); a(f'v_lshl_add_u32 v{T}, v{T+1}, {ib[1]}, v{T}')
        a(f'v_lshl_add_u32 v{T}, v{vJ}, 4, v{T}')
        a(f's_lshl_b32 s15, {sC}, {tb0}'); a(f's_add_u32 s15, s15, {hex(soff(31))}')
        a(f'v_add_u32 v{vDA}, s15, v{T}')
        x = {1: (3, -1, -1, 2), 2: (3, 4, 1, 2), 3: (4, 4, 1, 3), 4: (4, 4, 1, 2)}[tail]
        a(f's_cmp_ge_u32 {sC}, 4'); a(f's_cselect_b32 s33, {x[0]}, {x[1]}'); a(f's_cselect_b32 s35, 1, {x[2]}')
        if not early: a(f's_cmp_eq_u32 {sC}, 7'); a('s_cselect_b32 s33, -1, s33'); a(f's_cselect_b32 s34, {x[3]}, -1')
        if two:
            a(f's_cmp_eq_u32 {sC}, 6'); a('s_cselect_b32 s33, -1, s33'); a('s_cselect_b32 s37, 1, -1')
            a(f'v_lshlrev_b32 v{G+3}, 4, v{vL}')
    if touch2:
        a(f's_cmp_lg_u32 {sC}, 7'); a('s_cbranch_scc1 L_t2')
        a(f'v_mov_b32 v{T}, 0')
        a(f'buffer_load_dword v{vDUM}, v{T}, {sOUT}, 0 offen nt      ; first touch of the output page (value unused)')
        a('L_t2:')
    npad = [0]
    def pad():
        if pads: a(f'L_pad{npad[0]}:'); a('s_cbranch_execz L_back'); npad[0] += 1
    if pads:
        c('each wave visits one line of the closing code once, so that it is in the instruction cache when needed')
        a('s_mov_b64 exec, 0')
        for k in range(7): a(f's_cmp_eq_u32 {sC}, {k}'); a(f's_cbranch_scc1 L_pad{k}')
        a('s_branch L_pad7')
        a('L_back:')
        a('s_mov_b64 exec, -1')
    a('s_waitcnt lgkmcnt(0)')
    a(f'v_readfirstlane_b32 {sC0}, v{G+2}')
    if wpre: a(f'ds_read_b128 {q(W4)}, v{vWA}')
    a('.p2align 3')
    a('L_v:')
    if not wpre: a(f'ds_read_b128 {q(W4)}, v{vWA}')
    a(f'v_add_u32 v{vWA}, 64, v{vWA}')
    for t in range(4): a(f'v_add_u32 v{T+4+t}, {sSLOT}, v{AK+t}')
    a(f's_add_u32 {sSLOT}, {sSLOT}, 0x8000'); a(f's_and_b32 {sSLOT}, {sSLOT}, 0x1ffff')
    a('s_waitcnt lgkmcnt(0)')
    for r in range(4): a(f'v_add_f32 v{W4+r}, {sC0}, v{W4+r}')
    for r in range(4): a(f'v_cvt_pk_bf16_f32 v{T+r}, 0, v{W4+r}')
    for r in range(4): a(f'v_fma_f32 v{T+r}, -v{T+r}, v{vM01}, v{W4+r}')
    a(f'v_add_f32 v{W4}, v{W4}, v{W4+1}'); a(f'v_add_f32 v{W4+2}, v{W4+2}, v{W4+3}')
    a(f'v_add_f32 v{vDEN}, v{vDEN}, v{W4}'); a(f'v_add_f32 v{vDEN}, v{vDEN}, v{W4+2}')
    for r in range(4): a(f'v_cvt_pk_bf16_f32 v{T+r}, v{T+r}, v{T+r}')
    a(f'v_mfma_f32_16x16x4_f32 {q(S)}, v{vONE}, v{vDEN}, 0')
    for r in range(4):
        for n in range(4): a(f'v_and_b32 v{P+4*r+n}, v{T+r}, v{MASK+n}')
    a(f'ds_write_b32 v{G}, v{S}')
    a(f's_cmp_eq_u32 {sCNT}, 32'); a('s_cbranch_scc1 L_v1')
    if two: a(f's_cmp_eq_u32 {sCNT}, s37'); a('s_cbranch_scc1 L_d4'); a('L_v0:')
    def cst(cnt, reg, lab):
        a(f's_cmp_eq_u32 {sCNT}, {cnt}'); a(f's_cbranch_scc0 {lab}'); a(f's_memrealtime s[{reg}:{reg+1}]'); a('s_waitcnt lgkmcnt(0)'); a(f'{lab}:')
    if stamps == 5:
        cst(31, 54, 'L_y1'); cst(30, 58, 'L_y2')
        a(f's_cmp_eq_u32 {sCNT}, 20'); a('s_cbranch_scc0 L_y5')
        for i in range(4): a(f's_sub_u32 s15, s{54+2*i}, s52'); a(f'v_mov_b32 v{KR+i}, s15')
        a('s_lshl_b32 s15, s39, 4'); a('s_add_u32 s15, s15, 0x200000'); a(f'v_mov_b32 v{T}, s15')
        a(f'global_store_dwordx4 v{T}, {q(KR)}, s[70:71]'); a('s_waitcnt vmcnt(0)')
        a('L_y5:')
    a('s_waitcnt lgkmcnt(0)')
    a('s_barrier')
    if stamps == 5: cst(31, 56, 'L_y3'); cst(30, 60, 'L_y4')
    D0 = E; R0 = FR + 4
    def pkadd(d, x, y): a(f'v_pk_add_f32 v[{d}:{d+1}], v[{x}:{x+1}], v[{y}:{y+1}]')
    def den():
        pkadd(D0, D0, D0+2); pkadd(D0+4, D0+4, D0+6); pkadd(D0, D0, D0+4)
        a(f'v_add_f32 v{D0}, v{D0}, v{D0+1}')
        a(f'v_add_f32 v{D0}, {f32(1e-6)}, v{D0}')
        a(f'v_rcp_f32 v{D0+1}, v{D0}')
    def direct():
        for t in range(4): a(f'global_load_dwordx4 {q(DV+4*t)}, v{vDA}, s[8:9] offset:{256*t} nt')
    if tail:
        a(f's_cmp_eq_u32 {sCNT}, s33'); a('s_cbranch_scc1 L_d1')
        a(f's_cmp_eq_u32 {sCNT}, s35'); a('s_cbranch_scc1 L_d3')
    a('L_v1:')
    for t in range(4): a(f'ds_read_b128 {q(KR+4*t)}, v{T+4+t}')
    if wpre: a(f'ds_read_b128 {q(W4)}, v{vWA}')
    a(f's_sub_u32 {sCNT}, {sCNT}, 1')
    for t in range(4):
        a(f's_waitcnt lgkmcnt({3-t+wpre})')
        a(f'v_mfma_f32_16x16x32_bf16 {q(ACC)}, {q(P+4*t)}, {q(KR+4*t)}, {q(ACC)}')
    if tail and not early: a(f's_cmp_eq_u32 {sCNT}, s34'); a('s_cbranch_scc1 L_d2')
    a(f's_cmp_lg_u32 {sCNT}, 0'); a('s_cbranch_scc1 L_v')
    c('---------------- cross-wave reduction, division, store')
    if not tail: a(f's_cmp_eq_u32 {sC}, 0'); a('s_cbranch_scc1 L_fin')
    a('L_wr:')
    a(f'ds_write_b128 v{FR+3}, {q(ACC)}')
    a('s_waitcnt lgkmcnt(0)')
    a('s_barrier')
    a('s_endpgm')
    if tail:
        a('L_d1:'); direct(); a('s_branch L_v1')
        pad()
        if not early: a('L_d2:')
        if two:
            a(f'v_subrev_u32 v{T}, {1 << tb0}, v{vDA}')
            for t in range(4): a(f'global_load_dwordx4 {q(DV2+4*t)}, v{T}, s[8:9] offset:{256*t} nt')
        if not early: direct(); a('s_branch L_v')
        if two:
            c('consumer 6 hands its last operand to consumer 7 (ring slot 1 is free by now)')
            a('L_d4:')
            for t in range(4): a(f'ds_write_b128 v{G+3}, {q(P+4*t)} offset:{32768 + 1024*t}')
            a('s_branch L_v0')
        pad()
        a('L_d3:')
        a(f's_cmp_eq_u32 {sC}, 7'); a('s_cbranch_scc1 L_fin')
        if two: a(f's_cmp_eq_u32 {sC}, 6'); a('s_cbranch_scc1 L_wr')
        for t in range(4):
            a(f's_waitcnt vmcnt({3-t})')
            a(f'v_mfma_f32_16x16x32_bf16 {q(ACC)}, {q(P+4*t)}, {q(DV+4*t)}, {q(ACC)}')
        a('s_branch L_wr')
        pad()
        a('L_fin:')
        for i in range(2): a(f'ds_read_b128 {q(D0+4*i)}, v{FR+1} offset:{16*i}')
        if two:
            for t in range(4): a(f'ds_read_b128 {q(KR+4*t)}, v{G+3} offset:{32768 + 1024*t}')
        a(f'v_lshlrev_b32 v{T}, 4, v{vL}')
        a('s_waitcnt lgkmcnt(0)')
        den()
        def own(dst):
            for t in range(4):
                a(f's_waitcnt vmcnt({3-t})')
                a(f'v_mfma_f32_16x16x32_bf16 {q(dst)}, {q(P+4*t)}, {q(DV+4*t)}, {q(dst)}')
        pad()
        if fo == 2: own(ACC)
        a('s_barrier')
        for w in range(7): a(f'ds_read_b128 {q(R0+4*w)}, v{T} offset:{1024*w}')
        if fo == 1: own(ACC)
        for w in range(1, 7):
            if w in (1, 4): pad()
            a(f's_waitcnt lgkmcnt({6-w})')
            pkadd(R0, R0, R0+4*w); pkadd(R0+2, R0+2, R0+4*w+2)
        pad()
        pkadd(R0, R0, ACC); pkadd(R0+2, R0+2, ACC+2)
        if two:
            for t in range(4):
                a(f's_waitcnt vmcnt({7-t})')
                a(f'v_mfma_f32_16x16x32_bf16 {q(R0)}, {q(KR+4*t)}, {q(DV2+4*t)}, {q(R0)}')
        if fo == 0: own(R0)
    else:
        a('L_fin:')
        for i in range(2): a(f'ds_read_b128 {q(D0+4*i)}, v{FR+1} offset:{16*i}')
        a('s_barrier')
        for w in range(1, 8): a(f'ds_read_b128 {q(R0+4*w)}, v{FR+3} offset:{1024*w}')
        a('s_waitcnt lgkmcnt(7)')
        den()
        for w in range(1, 8):
            a(f's_waitcnt lgkmcnt({7-w})')
            src = ACC if w == 1 else R0
            pkadd(R0, src, R0+4*w); pkadd(R0+2, src+2, R0+4*w+2)
    pad()
    a(f'v_permlane32_swap_b32 v{R0}, v{R0+2}')
    a(f'v_permlane32_swap_b32 v{R0+1}, v{R0+3}')
    pkadd(R0, R0, R0+2)
    a(f'v_mul_f32 v{R0}, v{R0}, v{D0+1}'); a(f'v_mul_f32 v{R0+1}, v{R0+1}, v{D0+1}')
    a(f'v_cvt_pk_bf16_f32 v{R0}, v{R0}, v{R0+1}')
    a(f'buffer_store_dword v{R0}, v{FR+2}, {sOUT}, 0 offen')
    if stamps:
        if stamps == 3: a('s_sub_u32 s62, s60, s52')
        a('s_memrealtime s[66:67]'); a('s_memtime s[48:49]')
        a('s_getreg_b32 s60, hwreg(HW_REG_XCC_ID)'); a('s_getreg_b32 s61, hwreg(HW_REG_HW_ID)')
        a('s_waitcnt lgkmcnt(0)')
        a('s_sub_u32 s48, s48, s50')
        if stamps == 3: a('s_mov_b32 s61, s62')
        for i, s in enumerate(['s52','s53','s66','s67','s60','s61','s48','0']): a(f'v_mov_b32 v{P+i}, {s}')
        a('s_lshl_b32 s15, s2, 5'); a(f'v_mov_b32 v{T}, s15')
        a('s_mov_b64 exec, 1')
        a(f'global_store_dwordx4 v{T}, {q(P)}, s[70:71]')
        a(f'global_store_dwordx4 v{T}, {q(P+4)}, s[70:71] offset:16')
    a('L_done:')
    a('s_endpgm')
    body = a.finalize()
    tl = f""".section .rodata,"a"
.p2align 6
.amdhsa_kernel {KN}
  .amdhsa_next_free_vgpr {NV}
  .amdhsa_next_free_sgpr 72
  .amdhsa_accum_offset {(NV+3)//4*4}
  .amdhsa_group_segment_fixed_size 0
  .amdhsa_kernarg_size 56
  .amdhsa_user_sgpr_count 2
  .amdhsa_user_sgpr_kernarg_segment_ptr 1
  .amdhsa_system_sgpr_workgroup_id_x 1
  .amdhsa_float_denorm_mode_32 3
.end_amdhsa_kernel
"""
    sys.stderr.write(f'NV={NV} nops={a.nops}\n')
    return body + tl

if __name__ == '__main__':
    out = []
    for spec in sys.argv[1:]:
        kw = {}
        name = None
        for kv in spec.split(','):
            if not kv: continue
            k, v = kv.split('=')
            if k == 'out': name = v; continue
            if k not in ('so',):
                try: v = ast.literal_eval(v)
                except Exception: v = v.replace('+', ' ')
            kw[k] = v
        name = name or ('scratch/k/e_' + spec.replace('=', '').replace(',', '_').replace('+', '') + '.s')
        open(name, 'w').write(gen(**kw))
        out.append(name)
    print(' '.join(out))
```
